```python
import torch

def _softmax(x, axis=-1):
    return torch.softmax(x, dim=axis)
def _gelu(x):
    return torch.nn.functional.gelu(x, approximate="tanh")
def _silu(x):
    return torch.nn.functional.silu(x)
def _sigmoid(x):
    return torch.sigmoid(x)
def _layernorm(x, axis=-1, eps=1e-5):
    m = x.mean(dim=axis, keepdim=True)
    v = x.var(dim=axis, keepdim=True, unbiased=False)
    return (x - m) / torch.sqrt(v + eps)
def _scatter_add(tgt, idx, src, axis=0):
    return tgt.clone().index_add_(axis, idx, src)
def _segment_sum(src, seg, n):
    out = torch.zeros((n,) + src.shape[1:], dtype=src.dtype)
    return out.index_add_(0, seg, src)
def _pad(x, pw):
    flat = tuple(v for pair in reversed(pw) for v in pair)
    return torch.nn.functional.pad(x, flat)

kernel_name = 'standalone__weight_only_int_squeezellm__prompt'

def setup_inputs():

    _w = (lambda a: (lambda t: t.to(torch.bfloat16) if t.is_floating_point() else t)(torch.as_tensor(a)))
    B, S, D, F = 1, 2048, 1024, 3584
    bits = 8 if (2 <= 8 <= 4) else 4
    L = 2 ** bits
    qw = torch.randint(0, L, (D, F)).to(torch.int64)
    lut = (lambda *s: torch.randn(*s, dtype=torch.bfloat16) * 0.05)(L, F)
    return {
        "x": _w((lambda *s: torch.randn(*s, dtype=torch.bfloat16) * 0.05)(B, S, D)),
        "qw": _w(qw),
        "lut": _w(lut),
    }

def reference(x, qw, lut):
    w = (lambda x, i, axis: torch.take_along_dim(x, i, dim=axis))(lut, qw, axis=0)
    w = (lambda x, dt: x.to(dt))(w, x.dtype)
    return torch.einsum('bsd,df->bsf', x, w)
```

```python
NAME="standalone__weight_only_int_squeezellm__prompt"
hdr=open('/code/%s.s.ref'%NAME).read().split('; Override')[0]
o=[]
a=o.append
a(hdr.rstrip())
a("; @launch grid=(7168,1,1) block=(64,1,1) lds=0")
a('.amdgcn_target "amdgcn-amd-amdhsa--gfx950"')
a(".text")
a(".globl %s_kernel"%NAME)
a(".p2align 8")
a(".type %s_kernel,@function"%NAME)
a("%s_kernel:"%NAME)
a("""
  s_cmp_ge_u32 s2, 7168
  s_cbranch_scc1 L_done
  s_load_dwordx4 s[4:7], s[0:1], 0
  s_load_dwordx4 s[8:11], s[0:1], 16
  s_waitcnt lgkmcnt(0)
  s_mov_b32 s12, s4
  s_mov_b32 s13, s5
  s_mov_b32 s14, 4194304
  s_mov_b32 s15, 0x20000
  s_mov_b32 s16, s6
  s_mov_b32 s17, s7
  s_mov_b32 s18, 14680064
  s_mov_b32 s19, 0x20000
  s_mov_b32 s20, s8
  s_mov_b32 s21, s9
  s_mov_b32 s22, 114688
  s_mov_b32 s23, 0x20000
  s_mov_b32 s24, s10
  s_mov_b32 s25, s11
  s_mov_b32 s26, 14680064
  s_mov_b32 s27, 0x20000
  s_and_b32 s28, s2, 63      ; m tile
  s_lshr_b32 s29, s2, 6      ; n tile
  v_and_b32 v1, 31, v0
  v_lshrrev_b32 v2, 5, v0
  s_lshl_b32 s30, s28, 5
  v_add_u32 v3, s30, v1
  v_lshlrev_b32 v3, 11, v3
  v_lshl_add_u32 v3, v2, 4, v3
  s_lshl_b32 s31, s29, 5
  v_add_u32 v4, s31, v1      ; n
  v_lshlrev_b32 v5, 1, v4
  v_lshlrev_b32 v4, 2, v4
  s_mov_b32 s32, 114688
  v_mul_lo_u32 v6, v2, s32
  v_add_u32 v4, v4, v6
  s_mov_b32 s33, 7168
""")
for i in range(16): a("  v_mov_b32 v%d, 0"%(32+i))
a("  s_mov_b32 s34, 0   ; k")
a("  s_mov_b32 s35, 0   ; q soffset")
a("L_k:")
a("  s_lshl_b32 s36, s34, 1")
a("  buffer_load_dwordx4 v[8:11], v3, s[12:15], s36 offen")
for j in range(8):
    a("  buffer_load_dword v%d, v4, s[16:19], s35 offen"%(16+j))
    a("  s_add_u32 s35, s35, 14336")
a("  s_add_u32 s35, s35, 114688")
a("  s_waitcnt vmcnt(0)")
for j in range(8):
    a("  v_mad_u32_u24 v%d, v%d, s33, v5"%(16+j,16+j))
for j in range(8):
    a("  buffer_load_ushort v%d, v%d, s[20:23], 0 offen"%(16+j,16+j))
a("  s_waitcnt vmcnt(0)")
for j in range(4):
    a("  v_lshl_or_b32 v%d, v%d, 16, v%d"%(12+j,17+2*j,16+2*j))
a("  s_nop 1")
a("  v_mfma_f32_32x32x16_bf16 v[32:47], v[12:15], v[8:11], v[32:47]")
a("  s_add_u32 s34, s34, 16")
a("  s_cmp_lt_u32 s34, 1024")
a("  s_cbranch_scc1 L_k")
a("  s_nop 15")
a("""
  v_add_u32 v3, s30, v1
  v_mul_lo_u32 v3, v3, s33
  s_lshl_b32 s31, s31, 1
  v_lshl_add_u32 v3, v2, 3, v3
  v_add_u32 v3, s31, v3
""")
for g in range(4):
    a("  v_cvt_pk_bf16_f32 v%d, v%d, v%d"%(8+2*(g&1),32+4*g,33+4*g))
    a("  v_cvt_pk_bf16_f32 v%d, v%d, v%d"%(9+2*(g&1),34+4*g,35+4*g))
    a("  buffer_store_dwordx2 v[%d:%d], v3, s[24:27], 0 offen offset:%d"%(8+2*(g&1),9+2*(g&1),16*g))
    a("  s_nop 1")
a("L_done:")
a("  s_endpgm")
a('.section .rodata,"a"')
a(".p2align 6")
a(".amdhsa_kernel %s_kernel"%NAME)
a("""  .amdhsa_next_free_vgpr 48
  .amdhsa_next_free_sgpr 48
  .amdhsa_accum_offset 48
  .amdhsa_group_segment_fixed_size 0
  .amdhsa_kernarg_size 48
  .amdhsa_user_sgpr_count 2
  .amdhsa_user_sgpr_kernarg_segment_ptr 1
  .amdhsa_system_sgpr_workgroup_id_x 1
.end_amdhsa_kernel""")
print("\n".join(o))
```

```python
NAME="standalone__weight_only_int_squeezellm__prompt"
def header():
    return open('/code/%s.s.ref'%NAME).read().split('; Override')[0].rstrip()
def kd(name,vgpr,sgpr=102,accum=None):
    if accum is None: accum=min(256,(vgpr+3)//4*4)
    return """.amdhsa_kernel %s
  .amdhsa_next_free_vgpr %d
  .amdhsa_next_free_sgpr %d
  .amdhsa_accum_offset %d
  .amdhsa_group_segment_fixed_size 0
  .amdhsa_kernarg_size 48
  .amdhsa_user_sgpr_count 2
  .amdhsa_user_sgpr_kernarg_segment_ptr 1
  .amdhsa_system_sgpr_workgroup_id_x 1
.end_amdhsa_kernel"""%(name,vgpr,sgpr,accum)
def single(body,grid,block,lds,vgpr,sgpr=102,accum=None):
    k=NAME+"_kernel"
    return "\n".join([header(),"; @launch grid=(%d,1,1) block=(%d,1,1) lds=%d"%(grid,block,lds),
      '.amdgcn_target "amdgcn-amd-amdhsa--gfx950"',".text",".globl "+k,".p2align 8",".type %s,@function"%k,k+":",body,
      '.section .rodata,"a"',".p2align 6",kd(k,vgpr,sgpr,accum),""])
def srd(d,base,size):
    return "  s_mov_b32 s%d, s%d\n  s_mov_b32 s%d, s%d\n  s_mov_b32 s%d, %d\n  s_mov_b32 s%d, 0x20000"%(d,base,d+1,base+1,d+2,size,d+3)
```

```python
import sys,struct
from common import *

STG=28672
XST=16384
BUF=STG+XST
OROW=464

def wgmap(a,mt,nt,t0,t1):
    a(f"  s_and_b32 s{t0}, s2, 1\n  s_lshl_b32 s{t0}, s{t0}, 3\n  s_bfe_u32 s{t1}, s2, 0x30003\n  s_add_u32 s{mt}, s{t0}, s{t1}")
    a(f"  s_bfe_u32 s{t0}, s2, 0x20001\n  s_lshl_b32 s{t0}, s{t0}, 2\n  s_lshr_b32 s{t1}, s2, 6\n  s_add_u32 s{nt}, s{t0}, s{t1}")

def f32(x): return hex(struct.unpack('<I',struct.pack('<f',x))[0])

def k1(P):
    o=[];a=o.append
    a("  s_cmp_ge_u32 s2, 256\n  s_cbranch_scc1 L1_done")
    a("  s_load_dwordx4 s[4:7], s[0:1], 0\n  s_load_dwordx2 s[8:9], s[0:1], 16\n  s_load_dwordx2 s[10:11], s[0:1], 40")
    wgmap(a,30,31,32,33)
    a("  v_lshrrev_b32 v1, 6, v0\n  v_and_b32 v2, 63, v0")
    a("  v_readfirstlane_b32 s33, v1")
    a(f"  v_cvt_f32_u32 v3, v0\n  v_add_f32 v3, 0.5, v3\n  v_mul_f32 v3, {f32(1/28)}, v3\n  v_cvt_u32_f32 v3, v3")
    a("  v_mul_u32_u24 v4, 28, v3\n  v_sub_u32 v4, v0, v4\n  v_mul_u32_u24 v3, 7168, v3\n  v_lshl_add_u32 v3, v4, 4, v3")
    a("  s_mul_i32 s34, s31, 448")
    a("  s_lshl_b32 m0, s33, 10")
    a("  s_lshl_b32 s35, s33, 4\n  s_add_u32 s35, s35, s30")
    a("  s_mul_i32 s36, s35, %d\n  s_mul_i32 s37, s31, 896\n  s_add_u32 s36, s36, s37"%(8*14336))
    a("  v_lshlrev_b32 v5, 4, v2\n  v_add_u32 v5, s36, v5\n  v_mov_b32 v6, 0x7ff00000\n  v_cmp_lt_u32 vcc, 55, v2")
    a("  s_nop 0\n  s_waitcnt lgkmcnt(0)")
    a("  v_cndmask_b32 v5, v5, v6, vcc")
    a(srd(12,4,4194304)); a(srd(16,6,14680064)); a(srd(20,8,114688)); a(srd(24,10,16*16*STG))
    a("  buffer_load_dwordx4 v3, s[20:23], s34 offen lds")
    for i in range(8):
        a("  s_mov_b32 s38, %d\n  buffer_load_dwordx4 v[%d:%d], v5, s[16:19], s38 offen"%(i*14336,16+4*i,19+4*i))
    if P.get('touch',1):
        a("  s_cmp_ge_u32 s33, 2\n  s_cbranch_scc1 L1_nt")
        a("  s_lshl_b32 s38, s2, 14\n  v_lshlrev_b32 v7, 7, v0\n  buffer_load_dword v8, v7, s[12:15], s38 offen")
        a("  s_waitcnt vmcnt(9)\n  s_branch L1_nt2\nL1_nt:\n  s_waitcnt vmcnt(8)\nL1_nt2:")
    else:
        a("  s_waitcnt vmcnt(8)")
    a("  v_min_u32 v9, 55, v2\n  v_lshlrev_b32 v9, 3, v9")
    a("  v_cmp_lt_u32 vcc, 27, v2\n  v_subrev_u32 v10, 28, v2\n  s_nop 0\n  v_cndmask_b32 v10, v2, v10, vcc\n  v_cndmask_b32 v11, 0, 28, vcc" .replace("v_cndmask_b32 v11, 0, 28, vcc","v_mov_b32 v12, 28\n  v_cndmask_b32 v11, 0, v12, vcc"))
    a("  v_and_b32 v12, 24, v10\n  v_and_b32 v13, 1, v10\n  v_lshl_add_u32 v12, v13, 2, v12\n  v_bfe_u32 v13, v10, 1, 2\n  v_add_u32 v12, v12, v13")
    a("  v_cmp_lt_u32 vcc, 23, v10\n  s_nop 1\n  v_cndmask_b32 v12, v12, v10, vcc\n  v_add_u32 v12, v12, v11")
    a("  v_cmp_lt_u32 vcc, 55, v2\n  s_nop 1\n  v_cndmask_b32 v12, v12, v2, vcc")
    a("  s_lshl_b32 s38, s33, 12\n  s_add_u32 s38, s38, 8192")
    a("  v_lshl_add_u32 v12, v12, 6, s38")
    a("  v_lshl_add_u32 v13, v2, 4, s38")
    a("  s_mul_i32 s36, s31, %d\n  s_mul_i32 s37, s35, 3584\n  s_add_u32 s36, s36, s37\n  v_lshl_add_u32 v14, v2, 4, s36"%(16*STG))
    a("  v_mov_b32 v6, 0x7ff00000\n  v_cmp_lt_u32 vcc, 31, v2\n  s_mov_b32 s39, 448\n  s_nop 0\n  v_cndmask_b32 v15, v14, v6, vcc")
    a("  s_barrier")
    for i in range(8):
        a("  s_waitcnt vmcnt(%d)"%(7-i+ (0)) if not P.get('touch',1) else "  s_waitcnt vmcnt(%d)"%(7-i))
        for j in range(4):
            r=16+4*i+j
            a("  v_mad_u32_u24 v%d, v%d, s39, v9"%(r,r))
        for j in range(4):
            r=16+4*i+j
            a("  ds_read_u16 v%d, v%d offset:%d"%(r,r,2*j))
    a("  s_waitcnt lgkmcnt(0)")
    for j in range(4):
        for p in range(4):
            a("  v_lshl_or_b32 v%d, v%d, 16, v%d"%(48+4*j+p,16+4*(2*p+1)+j,16+4*(2*p)+j))
        a("  ds_write_b128 v12, v[%d:%d] offset:%d"%(48+4*j,51+4*j,16*j))
    a("  s_waitcnt lgkmcnt(0)")
    for j in range(4): a("  ds_read_b128 v[%d:%d], v13 offset:%d"%(16+4*j,19+4*j,1024*j))
    aux=P.get('waux','')
    for j in range(4):
        a("  s_waitcnt lgkmcnt(%d)"%(3-j))
        a("  buffer_store_dwordx4 v[%d:%d], v%d, s[24:27], 0 offen offset:%d %s"%(16+4*j,19+4*j,14 if j<3 else 15,1024*j,aux))
    a("L1_done:\n  s_endpgm")
    return "\n".join(o)

def stamp(a,P,n):
    if P.get('st',0): a("  s_memrealtime s[%d:%d]\n  s_memtime s[%d:%d]"%(64+4*n,65+4*n,66+4*n,67+4*n))

def k2(P):
    o=[];a=o.append
    a("  s_cmp_ge_u32 s2, 256\n  s_cbranch_scc1 L2_done")
    stamp(a,P,0)
    a("  s_load_dwordx2 s[4:5], s[0:1], 0\n  s_load_dwordx2 s[8:9], s[0:1], 24\n  s_load_dwordx2 s[10:11], s[0:1], 40")
    wgmap(a,30,31,32,33)
    a("  v_lshrrev_b32 v1, 6, v0\n  v_and_b32 v2, 63, v0")
    a("  v_readfirstlane_b32 s33, v1")
    a("  s_cmp_ge_u32 s33, 4\n  s_cbranch_scc0 L2_cons")
    a("  s_sub_u32 s33, s33, 4")
    a("  v_lshrrev_b32 v3, 3, v2\n  v_lshlrev_b32 v3, 11, v3\n  v_lshrrev_b32 v4, 4, v2\n  v_xor_b32 v4, v4, v2\n  v_and_b32 v4, 7, v4\n  v_lshl_add_u32 v3, v4, 4, v3")
    a("  s_lshl_b32 s34, s30, 18\n  s_lshl_b32 s35, s33, 16\n  s_add_u32 s34, s34, s35\n  v_add_u32 v3, s34, v3\n  v_xor_b32 v4, 64, v3")
    a("  v_add_u32 v5, %d, v3\n  v_add_u32 v6, %d, v4\n  v_add_u32 v4, %d, v4"%(2*15360,3*15360,15360))
    a("  s_mul_i32 s34, s31, %d\n  s_mul_i32 s35, s33, 7168\n  s_add_u32 s34, s34, s35\n  v_lshl_add_u32 v7, v2, 4, s34"%(16*STG))
    a("  s_lshl_b32 s40, s33, 12")
    a("  s_mul_i32 s41, s33, 7168\n  s_add_u32 s41, s41, %d"%XST)
    a("  s_mov_b32 s42, 0\n  s_mov_b32 s43, 0\n  s_mov_b32 s44, 0")
    a("  s_waitcnt lgkmcnt(0)")
    a(srd(12,4,4194304)); a(srd(16,10,16*16*STG)); a(srd(20,8,14680064))
    def issue(loop=0):
        ex=P.get('exp','') if loop else ''
        def ld(v,srd_,so,off,n):
            if 'r' in ex: a("  buffer_load_dwordx4 v[%d:%d], v%d, %s, %s offen offset:%d"%(40+4*n,43+4*n,v,srd_,so,off))
            else: a("  buffer_load_dwordx4 v%d, %s, %s offen offset:%d lds"%(v,srd_,so,off))
        a("  s_add_u32 m0, s44, s41\n  s_add_u32 s45, s43, 4096")
        if 'x' not in ex:
            for i in range(4): ld(7,"s[16:19]","s43",1024*i,i)
        a("  s_add_u32 m0, m0, 4096\n  s_add_u32 s43, s43, %d"%(0 if 'h' in ex else STG))
        if 'x' not in ex:
            for i in range(3): ld(7,"s[16:19]","s45",1024*i,4+i)
        a("  s_add_u32 m0, s44, s40\n  s_nop 0")
        if 'w' not in ex:
            for i,v in enumerate((3,4,5,6)): ld(v,"s[12:15]","s42",1024*i,7+i)
        if 'h' in ex: a("  s_sub_u32 s42, s42, 128")
        a("  s_add_u32 s42, s42, 128\n  s_add_u32 s44, s44, %d\n  s_cmp_eq_u32 s44, %d\n  s_cselect_b32 s44, 0, s44"%(BUF,3*BUF))
    issue(); issue()
    a("  s_lshl_b32 s34, s30, 7\n  s_lshl_b32 s35, s33, 5\n  s_add_u32 s34, s34, s35\n  s_mul_i32 s34, s34, 7168\n  s_mul_i32 s36, s31, 448\n  s_add_u32 s34, s34, s36")
    a("  s_mul_i32 s35, s35, %d\n  s_add_u32 s35, s35, %d\n  s_mov_b32 s36, %d\n  s_mov_b32 s37, 7168"%(OROW,BUF,OROW))
    for it in range(7):
        a(f"  v_add_u32 v8, {64*it}, v2\n  v_cvt_f32_u32 v9, v8\n  v_add_f32 v9, 0.5, v9\n  v_mul_f32 v9, {f32(1/28)}, v9\n  v_cvt_u32_f32 v9, v9")
        a(f"  v_mul_u32_u24 v10, 28, v9\n  v_sub_u32 v10, v8, v10\n  v_lshlrev_b32 v10, 4, v10")
        a(f"  v_mad_u32_u24 v{16+it}, v9, s36, v10\n  v_add_u32 v{16+it}, s35, v{16+it}")
        a(f"  v_mad_u32_u24 v{24+it}, v9, s37, v10\n  v_add_u32 v{24+it}, s34, v{24+it}")
    a("  s_waitcnt vmcnt(11)")
    stamp(a,P,1)
    a("  s_barrier")
    a("  s_mov_b32 s46, 0")
    a("L2_ld:")
    if not P.get('nodma',0): issue(1)
    a("  s_add_u32 s46, s46, 1\n  s_cmp_lt_u32 s46, 14\n  s_waitcnt vmcnt(11)\n  s_barrier\n  s_cbranch_scc1 L2_ld")
    a("  s_waitcnt vmcnt(0)\n  s_barrier")
    stamp(a,P,2)
    oaux=P.get('oaux','sc0 sc1')
    a("  s_mov_b32 s38, %d"%(16*7168))
    a("  s_barrier")
    stamp(a,P,3)
    for h in range(2):
        for it in range(7): a("  ds_read_b128 v[%d:%d], v%d offset:%d"%(32+28*h+4*it,35+28*h+4*it,16+it,h*16*OROW))
    for h in range(2):
        for it in range(7):
            a("  s_waitcnt lgkmcnt(%d)"%(13-7*h-it))
            a("  buffer_store_dwordx4 v[%d:%d], v%d, s[20:23], %s offen %s"%(32+28*h+4*it,35+28*h+4*it,24+it,"s38" if h else "0",oaux))
    if P.get('st',0):
        stamp(a,P,4)
        a("  s_waitcnt vmcnt(0)")
        stamp(a,P,5)
        a("  s_waitcnt lgkmcnt(0)")
        a("  s_cmp_eq_u32 s33, 0\n  s_cbranch_scc0 L2_done")
        a(srd(24,10,256<<20))
        for n in range(6):
            a("  v_writelane_b32 v8, s%d, %d\n  v_writelane_b32 v8, s%d, %d"%(64+4*n,2*n,66+4*n,2*n+1))
        a("  s_lshl_b32 s3, s2, 6\n  s_add_u32 s3, s3, %d\n  v_lshl_add_u32 v9, v2, 2, s3\n  v_cmp_gt_u32 vcc, 16, v2\n  s_and_saveexec_b64 s[60:61], vcc\n  buffer_store_dword v8, v9, s[24:27], 0 offen"%(16<<20))
    a("  s_endpgm")
    a("L2_cons:")
    if P.get('prio',0): a("  s_setprio 1")
    a("  s_lshr_b32 s34, s33, 1\n  s_and_b32 s35, s33, 1")
    a("  v_and_b32 v3, 15, v2\n  v_lshrrev_b32 v4, 4, v2")
    a("  v_lshrrev_b32 v5, 1, v3\n  v_xor_b32 v5, v5, v4\n  v_lshlrev_b32 v5, 4, v5\n  v_lshl_add_u32 v8, v3, 7, v5\n  s_lshl_b32 s36, s34, 13\n  v_add_u32 v8, s36, v8\n  v_xor_b32 v9, 64, v8")
    a("  v_mul_u32_u24 v5, 3584, v4\n  v_lshl_add_u32 v10, v3, 4, v5\n  s_mul_i32 s36, s35, 1792\n  s_add_u32 s36, s36, %d\n  v_add_u32 v10, s36, v10"%XST)
    a("  s_mul_i32 s36, s34, %d\n  s_mul_i32 s37, s35, 224\n  s_add_u32 s36, s36, s37\n  s_add_u32 s36, s36, %d"%(64*OROW,BUF))
    a("  v_mul_u32_u24 v5, %d, v3\n  v_add_u32 v5, s36, v5\n  v_lshl_add_u32 v11, v4, 4, v5\n  v_lshl_add_u32 v12, v4, 3, v5"%OROW)
    a("  v_mov_b32 v5, v8\n  v_mov_b32 v6, v9\n  v_mov_b32 v7, v10")
    ACC=16
    for r in range(112): a("  v_mov_b32 v%d, 0"%(ACC+r))
    a("  s_mov_b32 s44, 0\n  s_mov_b32 s46, 0")
    def frag(setb,kind,n):
        b=setb+(4*n if kind=='x' else 16+4*n)
        return "a[%d:%d]"%(b,b+3)
    def reads(setb,ks,force=0):
        if P.get('nods',0) and not force: return []
        r=[]
        xs=["  ds_read_b128 %s, v%d offset:%d"%(frag(setb,'x',i),5+ks,2048*i) for i in range(4)]
        ws=["  ds_read_b128 %s, v7 offset:%d"%(frag(setb,'w',t),ks*4*3584+256*t) for t in range(7)]
        return [ws[0]]+xs+ws[1:]
    def block(setb,rd,extra=None,every=2):
        k=0
        for t in range(7):
            for i in range(4):
                n=t*4+i
                acc=ACC+(i*7+t)*4
                a("  v_mfma_f32_16x16x32_bf16 v[%d:%d], %s, %s, v[%d:%d]"%(acc,acc+3,frag(setb,'w',t),frag(setb,'x',i),acc,acc+3))
                if extra and n in extra: a(extra[n])
                if n%every==every-1 and k<len(rd): a(rd[k]); k+=1
        assert k==len(rd)
    PS,QS=0,44
    a("  s_barrier")
    for r in reads(PS,0,1): a(r)
    if P.get('nods',0):
        for r in reads(QS,1,1): a(r)
    a("  s_waitcnt lgkmcnt(0)")
    a(".p2align 6\nL2_c:")
    block(PS,reads(QS,1),extra={1:"  s_add_u32 s44, s44, %d"%BUF,3:"  s_cmp_eq_u32 s44, %d"%(3*BUF),5:"  s_cselect_b32 s44, 0, s44\n  s_add_u32 s46, s46, 1"})
    a("  s_waitcnt lgkmcnt(0)\n  s_barrier")
    block(QS,reads(PS,0),extra={0:"  v_add_u32 v7, s44, v10\n  v_add_u32 v5, s44, v8",2:"  v_add_u32 v6, s44, v9\n  s_cmp_lt_u32 s46, 15"})
    a("  s_waitcnt lgkmcnt(0)\n  s_cbranch_scc1 L2_c")
    block(PS,reads(QS,1))
    a("  s_waitcnt lgkmcnt(0)\n  s_nop 0")
    block(QS,[])
    a("  s_nop 7")
    T=128
    k=0
    for i in range(4):
        for p in range(3):
            tb=T+4*(k%4); k+=1
            for h in range(2):
                acc=ACC+(i*7+2*p+h)*4
                a("  v_cvt_pk_bf16_f32 v%d, v%d, v%d\n  v_cvt_pk_bf16_f32 v%d, v%d, v%d"%(tb+2*h,acc,acc+1,tb+2*h+1,acc+2,acc+3))
            a("  ds_write_b128 v11, v[%d:%d] offset:%d"%(tb,tb+3,i*16*OROW+64*p))
        tb=T+4*(k%4); k+=1
        acc=ACC+(i*7+6)*4
        a("  v_cvt_pk_bf16_f32 v%d, v%d, v%d\n  v_cvt_pk_bf16_f32 v%d, v%d, v%d"%(tb,acc,acc+1,tb+1,acc+2,acc+3))
        a("  ds_write_b64 v12, v[%d:%d] offset:%d"%(tb,tb+1,i*16*OROW+192))
    a("  s_waitcnt lgkmcnt(0)\n  s_barrier")
    a("L2_done:\n  s_endpgm")
    return "\n".join(o)

def gen(**P):
    o=[header(),
       "; @launch kernel=dq_kernel grid=(256,1,1) block=(512,1,1) lds=40960",
       "; @launch kernel=mm_kernel grid=(256,1,1) block=(512,1,1) lds=%d"%(3*BUF),
       '.amdgcn_target "amdgcn-amd-amdhsa--gfx950"',".text",
       ".globl dq_kernel\n.p2align 8\n.type dq_kernel,@function\ndq_kernel:",k1(P),
       ".globl mm_kernel\n.p2align 8\n.type mm_kernel,@function\nmm_kernel:",k2(P),
       '.section .rodata,"a"',".p2align 6",kd("dq_kernel",64),".p2align 6",kd("mm_kernel",144+88,102,144),""]
    return "\n".join(o)
if __name__=="__main__":
    kw=dict(x.split('=') for x in sys.argv[1:])
    kw={k:(int(v) if v.lstrip('-').isdigit() else v) for k,v in kw.items()}
    print(gen(**kw))
```

```python
import sys,struct
from common import *

STG=28672; XST=16384; BUF=STG+XST; OROW=464
LUTB=3*BUF
FOFF=0x700000; EOFF=0x900000; WSZ=0x901000
SX,SQ,SL,SW,SO="s[16:19]","s[20:23]","s[24:27]","s[28:31]","s[32:35]"
ACC=16; PS,QS=0,44
def f32(x): return hex(struct.unpack('<I',struct.pack('<f',x))[0])

class Em:
    def __init__(s,o=None): s.o=[] if o is None else o; s.vm=[]
    def __call__(s,t): s.o.append(t)
    def v(s,t,tag=None): s.o.append(t); s.vm.append(tag)
    def cnt(s,tag):
        idx=max(i for i,t in enumerate(s.vm) if t==tag)
        n=len(s.vm)-1-idx
        assert n<=63,n
        return n
    def wait(s,tag): s.o.append("  s_waitcnt vmcnt(%d)"%s.cnt(tag))
    def text(s): return "\n".join(s.o)

def gen(**P):
    g=P.get
    a=Em(); ST=g('st',0); R=g('R',4); LR=R.bit_length()-1
    KU=g('k',4); XE=g('xe',1); TAIL=g('tail',0)
    waux=g('waux','sc1'); laux=g('laux','sc1'); oaux=g('oaux','sc0 sc1')
    names=[]
    def stamp(n):
        if ST: a("  s_memrealtime s[%d:%d]\n  s_memtime s[%d:%d]"%(64+4*n,65+4*n,66+4*n,67+4*n))
    def lst(nm):
        if ST and nm in g('sn','Blut,chk0,W0,B0,B1,B3,B8,B15,Bout,stack').split(','):
            n=len(names); assert n<11
            a("  s_memrealtime s[%d:%d]"%(80+2*n,81+2*n)); names.append(nm)

    a("  s_cmp_ge_u32 s2, 256\n  s_cbranch_scc1 L_done")
    stamp(0)
    a("  s_load_dwordx2 s[20:21], s[0:1], 8\n  s_load_dwordx2 s[24:25], s[0:1], 16\n  s_load_dwordx2 s[28:29], s[0:1], 40\n  s_load_dwordx2 s[16:17], s[0:1], 0\n  s_load_dwordx2 s[32:33], s[0:1], 24")
    for d,sz in ((16,4194304),(20,14680064),(24,114688),(28,WSZ),(32,14680064)): a("  s_mov_b32 s%d, %d\n  s_mov_b32 s%d, 0x20000"%(d+2,sz,d+3))
    a("  s_and_b32 s3, s2, 1\n  s_lshr_b32 s15, s2, 5\n  s_lshl_b32 s36, s3, 3\n  s_add_u32 s36, s36, s15")
    a("  s_and_b32 s14, s15, 3\n  s_lshl_b32 s14, s14, 1\n  s_add_u32 s14, s14, s3\n  s_and_b32 s15, s15, 4\n  s_lshl_b32 s15, s15, 1\n  s_add_u32 s14, s14, s15")
    a("  s_bfe_u32 s3, s2, 0x20001\n  s_lshl_b32 s3, s3, 2\n  s_bfe_u32 s37, s2, 0x20003\n  s_add_u32 s37, s37, s3")
    a("  v_lshrrev_b32 v1, 6, v0\n  v_and_b32 v2, 63, v0\n  v_readfirstlane_b32 s38, v1")
    for i in range(1,8): a("  s_mov_b32 s%d, %d"%(40+i,i*14336))
    a("  s_and_b32 s39, s38, 3\n  v_and_b32 v3, 255, v0\n  s_mov_b32 s48, 224\n  s_mov_b32 s49, 111\n  s_mov_b32 s56, 448")
    a("  v_cmp_gt_u32 vcc, s48, v3\n  v_mov_b32 v15, 0x7ff00000")
    a("  s_mul_i32 s52, s14, %d\n  s_mul_i32 s53, s37, 896\n  s_add_u32 s52, s52, s53"%(8*14336))
    a("  v_lshl_add_u32 v4, v3, 2, s52\n  v_cndmask_b32 v4, v15, v4, vcc")
    a("  v_lshlrev_b32 v5, 1, v3\n  v_add_u32 v5, %d, v5"%LUTB)
    a("  s_lshl_b32 s50, s37, 7\n  s_add_u32 s50, s50, %d"%EOFF)
    a("  s_cmp_ge_u32 s38, 4\n  s_cbranch_scc1 L_loader")
    def post(e):
        e("  v_cmp_lt_u32 s[54:55], s49, v3\n  v_subrev_u32 v6, 112, v3\n  v_mov_b32 v1, 1792")
        e("  v_cndmask_b32 v6, v3, v6, s[54:55]\n  v_cndmask_b32 v1, 0, v1, s[54:55]\n  v_lshrrev_b32 v7, 2, v6")
        e("  v_and_b32 v14, 24, v7\n  v_and_b32 v9, 1, v7\n  v_lshl_add_u32 v14, v9, 2, v14\n  v_bfe_u32 v9, v7, 1, 2\n  v_add_u32 v14, v14, v9")
        e("  v_cmp_lt_u32 s[54:55], 23, v7\n  v_and_b32 v6, 3, v6\n  v_cmp_gt_u32 vcc, s48, v3")
        e("  v_cndmask_b32 v14, v14, v7, s[54:55]\n  v_lshl_add_u32 v14, v14, 2, v6")
        e("  s_mul_i32 s52, s37, %d\n  s_mul_i32 s53, s14, 3584\n  s_add_u32 s52, s52, s53\n  v_add_u32 v1, s52, v1"%(16*STG))
        e("  v_lshl_add_u32 v6, v14, 4, v1\n  v_cndmask_b32 v6, v15, v6, vcc")
        e("  s_lshl_b32 s52, s37, %d\n  s_add_u32 s52, s52, %d"%(13+LR,FOFF))
        e("  s_lshr_b32 s53, s14, 1\n  s_lshl_b32 s53, s53, %d\n  s_add_u32 s53, s53, s52\n  s_and_b32 s54, s14, 1\n  s_lshl_b32 s54, s54, 2\n  s_add_u32 s54, s54, s39\n  s_lshl_b32 s54, s54, 3\n  s_add_u32 s53, s53, s54"%(7+LR))
        e("  v_lshl_add_u32 v7, v2, 7, s53")
        e("  s_and_b32 s53, s36, %d\n  s_lshl_b32 s53, s53, 7\n  s_lshl_b32 s54, s39, %d\n  s_add_u32 s53, s53, s54\n  s_add_u32 s53, s53, s52"%(R-1,7+LR))
        e("  s_add_u32 s4, s28, s53\n  s_addc_u32 s5, s29, 0")
    def load_e(e): e("  s_add_u32 s10, s28, s50\n  s_addc_u32 s11, s29, 0\n  s_load_dwordx2 s[6:7], s[10:11], 0")
    def nonce(e):
        e("  s_waitcnt lgkmcnt(0)\n  s_mul_i32 s8, s6, 1664525\n  s_mul_i32 s9, s7, 22695477\n  s_add_u32 s8, s8, 1013904223\n  s_add_u32 s9, s9, 1")
        e("  v_mov_b32 v10, s8\n  v_mov_b32 v11, s9")
    def qload(e,sl,Rq):
        if sl: e("  v_add_u32 v14, %d, v4"%(sl*128*14336))
        for i in range(8):
            e.v("  buffer_load_dword v%d, v%d, %s, %s offen %s"%(Rq+i,14 if sl else 4,SQ,"s%d"%(40+i) if i else "0",g('qaux','')),'q%d'%sl)
    def dequant(e,sl,Rq,T):
        e.wait('q%d'%sl)
        for i in range(8): e("  v_mad_u32_u24 v%d, v%d, s56, v5"%(Rq+i,Rq+i))
        for i in range(8): e("  ds_read_u16 v%d, v%d"%(Rq+i,Rq+i))
        for p in range(4):
            e("  s_waitcnt lgkmcnt(%d)\n  v_lshl_or_b32 v%d, v%d, 16, v%d"%(6-2*p,T+p,Rq+2*p+1,Rq+2*p))
        e("  s_mov_b32 s59, %d"%(sl*16*3584))
        e.v("  buffer_store_dwordx4 v[%d:%d], v6, %s, s59 offen %s"%(T,T+3,SW,waux),'w%d'%sl)
    def flag(e,sl):
        e.wait('w%d'%sl)
        e("  s_mov_b64 exec, %d\n  s_mov_b32 s59, %d"%((1<<R)-1,sl*1024*R))
        e.v("  buffer_store_dwordx2 v[10:11], v7, %s, s59 offen %s"%(SW,waux),'f%d'%sl)
        e("  s_mov_b64 exec, -1")

    if TAIL==0:
        LDSZ=LUTB+8192
        def obase(wm,half): return BUF+(wm*64+half*32)*OROW
    else:
        LDSZ=LUTB+32*OROW
        def obase(wm,half): return BUF+wm*32*OROW if half==0 else (BUF+64*OROW if wm==0 else LUTB)

    c=a
    c("  s_waitcnt lgkmcnt(0)")
    qload(c,0,128); load_e(c); qload(c,1,136)
    post(c)
    c("  s_lshr_b32 s52, s38, 1\n  s_and_b32 s53, s38, 1")
    c("  v_and_b32 v3, 15, v2\n  v_lshrrev_b32 v9, 4, v2")
    c("  v_lshrrev_b32 v1, 1, v3\n  v_xor_b32 v1, v1, v9\n  v_lshlrev_b32 v1, 4, v1\n  v_lshl_add_u32 v144, v3, 7, v1\n  s_lshl_b32 s54, s52, 13\n  v_add_u32 v144, s54, v144\n  v_xor_b32 v145, 64, v144")
    c("  v_mul_u32_u24 v1, 3584, v9\n  v_lshl_add_u32 v146, v3, 4, v1\n  s_mul_i32 s54, s53, 1792\n  s_add_u32 s54, s54, %d\n  v_add_u32 v146, s54, v146"%XST)
    c("  s_mul_i32 s55, s53, 224\n  v_mul_u32_u24 v1, %d, v3\n  v_add_u32 v1, s55, v1\n  v_lshl_add_u32 v147, v9, 4, v1\n  v_lshl_add_u32 v148, v9, 3, v1"%OROW)
    c("  s_cmp_eq_u32 s52, 0\n  s_cselect_b32 s54, %d, %d\n  v_add_u32 v149, s54, v147\n  v_add_u32 v150, s54, v148"%(obase(0,1),obase(1,1)) if False else "")
    c("  s_mul_i32 s54, s52, %d\n  s_add_u32 s54, s54, %d\n  s_mul_i32 s55, s52, %d\n  s_add_u32 s55, s55, %d"%(obase(1,0)-obase(0,0),obase(0,0),obase(1,1)-obase(0,1),obase(0,1)))
    c("  v_add_u32 v149, s55, v147\n  v_add_u32 v150, s55, v148\n  v_add_u32 v147, s54, v147\n  v_add_u32 v148, s54, v148")
    nonce(c)
    c("  s_barrier")
    stamp(1)
    dequant(c,0,128,16); stamp(2)
    dequant(c,1,136,20)
    if g('bst',0): c("  s_barrier")
    for j in range(2,KU): qload(c,j,48+8*j)
    flag(c,0); stamp(3)
    flag(c,1)
    for j in range(2,KU): dequant(c,j,48+8*j,16+4*j)
    for j in range(2,KU): flag(c,j)
    c("  v_mov_b32 v5, v144\n  v_mov_b32 v6, v145\n  v_mov_b32 v7, v146")
    for r in range(112): c("  v_mov_b32 v%d, 0"%(ACC+r))
    c("  s_mov_b32 s44, 0\n  s_mov_b32 s46, 0")
    if g('prio',0): c("  s_setprio 1")
    def frag(setb,kind,n):
        b=setb+(4*n if kind=='x' else 16+4*n)
        return "a[%d:%d]"%(b,b+3)
    def reads(setb,ks,ms=(0,1,2,3),vx=5,vw=7):
        xs=["  ds_read_b128 %s, v%d offset:%d"%(frag(setb,'x',i),vx+ks,2048*i) for i in ms]
        ws=["  ds_read_b128 %s, v%d offset:%d"%(frag(setb,'w',t),vw,ks*4*3584+256*t) for t in range(7)]
        return [ws[0]]+xs+ws[1:]
    def block(setb,fill,ms=(0,1,2,3),imajor=False):
        order=[(t,i) for i in ms for t in range(7)] if imajor else [(t,i) for t in range(7) for i in ms]
        for n,(t,i) in enumerate(order):
            acc=ACC+(i*7+t)*4
            c("  v_mfma_f32_16x16x32_bf16 v[%d:%d], %s, %s, v[%d:%d]"%(acc,acc+3,frag(setb,'w',t),frag(setb,'x',i),acc,acc+3))
            for x in fill.get(n,[]): c(x)
    def spread(items,first,step,fill=None):
        fill={} if fill is None else fill
        for k,x in enumerate(items): fill.setdefault(first+k*step,[]).append(x)
        return fill
    def even(items,n,fill,first=0):
        for k,x in enumerate(items): fill.setdefault(first+k*n//len(items),[]).append(x)
        return fill
    def cvtw(i):
        r=[]; half=i>>1; off=(i&1)*16*OROW
        for p in range(4):
            tb=128+4*(p&1)+8*(i&1)
            L=[]
            for h in range(2 if p<3 else 1):
                acc=ACC+(i*7+2*p+h)*4
                L+=["  v_cvt_pk_bf16_f32 v%d, v%d, v%d"%(tb+2*h,acc,acc+1),"  v_cvt_pk_bf16_f32 v%d, v%d, v%d"%(tb+2*h+1,acc+2,acc+3)]
            if p<3: L.append("  ds_write_b128 v%d, v[%d:%d] offset:%d"%(147+2*half,tb,tb+3,off+64*p))
            else: L.append("  ds_write_b64 v%d, v[%d:%d] offset:%d"%(148+2*half,tb,tb+1,off+192))
            r+=L
        return r
    c("  s_barrier")
    stamp(4)
    for r in reads(PS,0): c(r)
    c("  s_waitcnt lgkmcnt(0)")
    NLOOP=15 if TAIL==0 else 13
    f1={1:["  s_add_u32 s44, s44, %d"%BUF],3:["  s_cmp_eq_u32 s44, %d"%(3*BUF)],5:["  s_cselect_b32 s44, 0, s44\n  s_add_u32 s46, s46, 1"]}
    f2={0:["  v_add_u32 v7, s44, v146\n  v_add_u32 v5, s44, v144"],2:["  v_add_u32 v6, s44, v145\n  s_cmp_lt_u32 s46, %d"%NLOOP]}
    c(".p2align 6\nL_c:")
    block(PS,spread(reads(QS,1),1,2,dict(f1)))
    c("  s_waitcnt lgkmcnt(0)\n  s_barrier")
    block(QS,spread(reads(PS,0),1,2,dict(f2)))
    c("  s_waitcnt lgkmcnt(0)\n  s_cbranch_scc1 L_c")
    if TAIL==0:
        block(PS,spread(reads(QS,1),1,2))
        c("  s_waitcnt lgkmcnt(0)\n  s_nop 0")
        block(QS,{})
        stamp(5)
        c("  s_nop 7")
        for i in range(4):
            for x in cvtw(i): c(x)
        c("  s_waitcnt lgkmcnt(0)\n  s_barrier")
    else:
        H1,H2=(0,1),(2,3)
        block(PS,spread(reads(QS,1),1,2))
        c("  s_waitcnt lgkmcnt(0)\n  s_barrier")
        f={0:["  v_add_u32 v7, %d, v146"%(2*BUF),"  v_add_u32 v5, %d, v144"%(2*BUF)],2:["  v_add_u32 v6, %d, v145"%(2*BUF)]}
        block(QS,spread(reads(PS,0,H1),3,2,f))
        c("  s_waitcnt lgkmcnt(0)\n  s_nop 0")
        block(PS,spread(reads(QS,1,H1),0,1),H1)
        c("  s_waitcnt lgkmcnt(0)\n  s_barrier")
        block(QS,spread(reads(PS,0,H1,144,146),0,1),H1)
        c("  s_waitcnt lgkmcnt(0)\n  s_nop 0")
        block(PS,spread(reads(QS,1,H1,144,146),0,1),H1)
        c("  s_waitcnt lgkmcnt(0)\n  s_nop 0")
        block(QS,spread(reads(PS,0,H2),0,1),H1,True)
        c("  s_waitcnt lgkmcnt(0)\n  s_nop 0")
        cw=cvtw(0)+cvtw(1)
        f=spread(reads(QS,1,H2),0,1); even(cw[:20],14,f)
        block(PS,f,H2)
        c("  s_waitcnt lgkmcnt(0)\n  s_nop 0")
        f=spread(reads(PS,0,H2,144,146),0,1); even(cw[20:],11,f)
        block(QS,f,H2)
        c("  s_waitcnt lgkmcnt(0)\n  s_barrier")
        block(PS,spread(reads(QS,1,H2,144,146),0,1),H2)
        c("  s_waitcnt lgkmcnt(0)\n  s_nop 0")
        cw=cvtw(2)
        block(QS,spread(cw[:8],10,0),H2,True)
        stamp(5)
        for x in cw[8:]: c(x)
        for x in cvtw(3): c(x)
        c("  s_waitcnt lgkmcnt(0)\n  s_barrier")
    if ST:
        stamp(6)
        c("  s_waitcnt lgkmcnt(0)\n  s_cmp_eq_u32 s38, 0\n  s_cbranch_scc0 L_done\n  s_mov_b32 s30, 0x10000000")
        for n in range(7): c("  v_writelane_b32 v8, s%d, %d\n  v_writelane_b32 v8, s%d, %d"%(64+4*n,2*n,66+4*n,2*n+1))
        c("  s_lshl_b32 s3, s2, 6\n  s_add_u32 s3, s3, %d\n  v_lshl_add_u32 v9, v2, 2, s3\n  v_cmp_gt_u32 vcc, 16, v2\n  s_and_saveexec_b64 s[60:61], vcc\n  buffer_store_dword v8, v9, s[28:31], 0 offen"%((16<<20)+16384))
    c("  s_endpgm")

    l=Em(a.o)
    l("L_loader:")
    l("  s_lshl_b32 s52, s39, 7\n  v_add_u32 v16, s52, v2\n  s_mul_i32 s51, s37, 448\n  s_lshl_b32 s54, s39, 11\n  s_add_u32 m0, s54, %d"%LUTB)
    for j in range(2):
        l(f"  v_cvt_f32_u32 v19, v16\n  v_add_f32 v19, 0.5, v19\n  v_mul_f32 v19, {f32(1/28)}, v19\n  v_cvt_u32_f32 v19, v19")
        l("  v_mul_u32_u24 v20, 28, v19\n  v_sub_u32 v20, v16, v20\n  v_mul_u32_u24 v19, 7168, v19\n  v_lshl_add_u32 v%d, v20, 4, v19"%(22+j))
        if j==0: l("  v_add_u32 v16, 64, v16")
    l("  v_lshrrev_b32 v20, 3, v2\n  v_lshlrev_b32 v20, 11, v20\n  v_lshrrev_b32 v1, 4, v2\n  v_xor_b32 v1, v1, v2\n  v_and_b32 v1, 7, v1\n  v_lshl_add_u32 v20, v1, 4, v20")
    l("  s_lshl_b32 s52, s36, 18\n  s_lshl_b32 s53, s39, 16\n  s_add_u32 s53, s52, s53\n  v_add_u32 v16, s53, v20\n  v_xor_b32 v17, 64, v16")
    l("  v_add_u32 v18, %d, v16\n  v_add_u32 v19, %d, v17\n  v_add_u32 v17, %d, v17\n  s_lshl_b32 s60, s39, 12"%(2*15360,3*15360,15360))
    l("  s_waitcnt lgkmcnt(0)")
    if ST: names.append("start"); l("  s_mov_b32 s80, s64")
    l.v("  buffer_load_dwordx4 v22, %s, s51 offen lds"%SL,'lut')
    l("  s_add_u32 m0, m0, 1024\n  s_nop 0")
    l.v("  buffer_load_dwordx4 v23, %s, s51 offen lds"%SL,'lut')
    def xdma(s):
        l("  s_add_u32 m0, s60, %d\n  s_mov_b32 s62, %d"%((s%3)*BUF,s*128))
        for i in range(4): l.v("  buffer_load_dwordx4 v%d, %s, s62 offen offset:%d lds"%(16+i,SX,1024*i),'x%d'%s)
    def wdma(s):
        l("  s_add_u32 m0, s61, %d\n  s_mov_b32 s62, %d"%((s%3)*BUF,s*STG))
        for i in range(4): l.v("  buffer_load_dwordx4 v20, %s, s62 offen offset:%d %s lds"%(SW,1024*i,laux),'W%d'%s)
        l("  s_add_u32 m0, m0, 4096\n  s_add_u32 s62, s62, 4096")
        for i in range(3): l.v("  buffer_load_dwordx4 v20, %s, s62 offen offset:%d %s lds"%(SW,1024*i,laux),'W%d'%s)
    def poll(sl): l("  s_load_dwordx16 s[64:79], s[4:5], %d glc"%(sl*512*R))
    def check(sl):
        l("  s_mov_b32 s63, 0\nL_sp%d:"%sl)
        l("  s_waitcnt lgkmcnt(0)\n  s_xor_b64 s[10:11], s[64:65], s[8:9]")
        for i in range(1,8): l("  s_xor_b64 s[12:13], s[%d:%d], s[8:9]\n  s_or_b64 s[10:11], s[10:11], s[12:13]"%(64+2*i,65+2*i))
        l("  s_cbranch_scc0 L_ok%d"%sl)
        poll(sl)
        l("  s_add_u32 s63, s63, 1\n  s_cmp_lt_u32 s63, 20000\n  s_cbranch_scc1 L_sp%d\n  s_waitcnt lgkmcnt(0)\nL_ok%d:"%(sl,sl))
    for j in range(XE): xdma(j)
    load_e(l)
    l("  s_mul_i32 s53, s37, %d\n  s_mul_i32 s54, s39, 7168\n  s_add_u32 s53, s53, s54\n  v_lshl_add_u32 v20, v2, 4, s53\n  s_add_u32 s61, s54, %d"%(16*STG,XST))
    l("  s_lshl_b32 s53, s37, 14\n  s_add_u32 s52, s52, s53\n  s_lshl_b32 s53, s39, 12\n  s_add_u32 s52, s52, s53\n  v_cmp_gt_u32 vcc, 32, v2\n  v_lshl_add_u32 v21, v2, 7, s52\n  v_mov_b32 v8, s50\n  v_cndmask_b32 v21, v15, v21, vcc")
    post(l)
    nonce(l)
    l("  v_mov_b32 v12, s6\n  v_mov_b32 v13, s7")
    l.wait('lut')
    l("  s_barrier")
    lst('Blut')
    if XE<1: xdma(0)
    l("  s_lshr_b32 s54, s39, 1\n  s_and_b32 s55, s39, 1\n  s_lshl_b32 s52, s36, 7\n  s_lshl_b32 s53, s54, 6\n  s_add_u32 s52, s52, s53\n  s_lshl_b32 s53, s55, 4\n  s_add_u32 s52, s52, s53")
    l("  s_mul_i32 s52, s52, 7168\n  s_mul_i32 s53, s37, 448\n  s_add_u32 s52, s52, s53")
    l("  s_mul_i32 s53, s54, %d\n  s_mul_i32 s57, s54, %d\n  s_mul_i32 s55, s55, %d\n  s_add_u32 s53, s53, s55\n  s_add_u32 s53, s53, %d"%(obase(1,0)-obase(0,0),(obase(1,1)-obase(1,0))-(obase(0,1)-obase(0,0)),16*OROW,obase(0,0)))
    l("  s_add_u32 s57, s57, %d\n  s_mov_b32 s54, %d\n  s_mov_b32 s55, 7168"%(obase(0,1)-obase(0,0),OROW))
    for it in range(7):
        l(f"  v_add_u32 v40, {64*it}, v2\n  v_cvt_f32_u32 v41, v40\n  v_add_f32 v41, 0.5, v41\n  v_mul_f32 v41, {f32(1/28)}, v41\n  v_cvt_u32_f32 v41, v41")
        l(f"  v_mul_u32_u24 v42, 28, v41\n  v_sub_u32 v42, v40, v42\n  v_lshlrev_b32 v42, 4, v42")
        l(f"  v_mad_u32_u24 v{24+it}, v41, s54, v42\n  v_add_u32 v{24+it}, s53, v{24+it}")
        l(f"  v_mad_u32_u24 v{32+it}, v41, s55, v42\n  v_add_u32 v{32+it}, s52, v{32+it}")
    if g('bst',0): l("  s_barrier")
    if g('te',0): l.v("  buffer_load_dword v43, v21, %s, 0 offen"%SX,'t')
    poll(0); check(0); lst('chk0')
    wdma(0)
    poll(1)
    if XE<2: xdma(1)
    check(1); lst('chk1'); wdma(1)
    if g('touch',1) and not g('te',0): l.v("  buffer_load_dword v43, v21, %s, 0 offen"%SX,'t')
    poll(2)
    l.wait('W0')
    lst('W0')
    l("  s_barrier")
    lst('B0')
    QR=[64,72]; TR=[96,100]
    late={g('i0',0)+g('sp',2)*(j-KU):j for j in range(KU,8)}
    assert all(i<=2*j-6 for i,j in late.items())
    for i in range(14):
        s=i+2
        check(s)
        if s+1<16: poll(s+1)
        wdma(s); xdma(s)
        if i-2 in late: flag(l,late[i-2])
        if i-1 in late: dequant(l,late[i-1],QR[late[i-1]&1],TR[late[i-1]&1])
        if i in late: qload(l,late[i],QR[late[i]&1])
        l.wait('x%d'%(s-1) if s>2 else 'W1')
        l("  s_barrier")
        lst('B%d'%(s-1))
    l.wait('x15')
    l("  s_barrier")
    lst('B15')
    l("  s_cmp_eq_u32 s39, 0\n  s_cbranch_scc0 L_noe\n  s_mov_b64 exec, 1")
    l("  buffer_atomic_cmpswap_x2 v[10:13], v8, %s, 0 offen sc1\n  s_mov_b64 exec, -1\nL_noe:"%SW)
    l("  s_mov_b32 s62, %d"%(32*7168))
    for it in range(7): l("  v_add_u32 v%d, s57, v%d"%(104+it,24+it))
    l("  s_barrier")
    lst('Bout')
    def ord_(h):
        for it in range(7): l("  ds_read_b128 v[%d:%d], v%d"%(40+28*h+4*it,43+28*h+4*it,(104 if h else 24)+it))
    def ost(h,base):
        for it in range(7):
            l("  s_waitcnt lgkmcnt(%d)"%(base-it))
            l("  buffer_store_dwordx4 v[%d:%d], v%d, %s, %s offen %s"%(40+28*h+4*it,43+28*h+4*it,32+it,SO,"s62" if h else "0",oaux))
    if TAIL==0:
        ord_(0); ord_(1); ost(0,13); ost(1,6)
    else:
        ord_(0); ost(0,6)
        l("  s_barrier")
        lst('Bout2')
        ord_(1); ost(1,6)
    if ST:
        lst('stiss')
        l("  s_waitcnt vmcnt(0)")
        lst('stack')
        l("  s_waitcnt lgkmcnt(0)")
        for n in range(len(names)): l("  v_writelane_b32 v120, s%d, %d"%(80+2*n,n))
        l("  s_cmp_eq_u32 s38, %d\n  s_cbranch_scc0 L_done\n  s_mov_b32 s30, 0x10000000\n  s_lshl_b32 s3, s2, 8\n  s_add_u32 s3, s3, %d\n  v_lshl_add_u32 v9, v2, 2, s3\n  buffer_store_dword v120, v9, s[28:31], 0 offen"%(g('lw',4),(16<<20)+32768))
        open('names.txt','w').write(" ".join(names))
    l("L_done:\n  s_endpgm")
    return single(a.text(),256,512,LDSZ,152+88,102,152)
if __name__=="__main__":
    kw=dict(x.split('=') for x in sys.argv[1:])
    kw={k:(int(v) if v.lstrip('-').isdigit() else v) for k,v in kw.items()}
    print(gen(**kw))
```

```python
from common import *
def add_probe(s,offa,offb,mult=20,red=None):
    b=[];a=b.append
    a(".globl pr_kernel\n.p2align 8\n.type pr_kernel,@function\npr_kernel:")
    a("  s_cmp_ge_u32 s2, 1\n  s_cbranch_scc1 Lp_done")
    a("  s_load_dwordx2 s[10:11], s[0:1], 40\n  s_waitcnt lgkmcnt(0)")
    a(srd(24,10,256<<20))
    a("  v_lshlrev_b32 v1, 6, v0\n  s_mov_b32 s4, %d\n  s_mov_b32 s5, %d"%(offa,offb))
    for k in range(4):
        a("  buffer_load_dword v%d, v1, s[24:27], s4 offen\n  buffer_load_dword v%d, v1, s[24:27], s5 offen\n  s_add_u32 s4, s4, 4096\n  s_add_u32 s5, s5, 4096"%(4+k,8+k))
    a("  s_waitcnt vmcnt(0)")
    ra,rb=red
    for (base,r,sd) in ((4,ra,12),(8,rb,13)):
        a("  v_%s_u32 v%d, v%d, v%d\n  v_%s_u32 v%d, v%d, v%d\n  v_%s_u32 v%d, v%d, v%d"%(r,base,base,base+1,r,base+2,base+2,base+3,r,base,base,base+2))
        a("  s_nop 1\n  v_readlane_b32 s%d, v%d, 0"%(sd,base))
        for l in range(1,64): a("  v_readlane_b32 s14, v%d, %d\n  s_nop 0\n  s_%s_u32 s%d, s%d, s14"%(base,l,r,sd,sd))
    a("  s_sub_u32 s6, s13, s12\n  s_min_u32 s6, s6, 5000\n  s_mul_i32 s6, s6, %d"%mult)
    a("  s_memrealtime s[16:17]\n  s_waitcnt lgkmcnt(0)")
    a("Lp_l:\n  s_memrealtime s[18:19]\n  s_waitcnt lgkmcnt(0)\n  s_sub_u32 s18, s18, s16\n  s_cmp_lt_u32 s18, s6\n  s_cbranch_scc1 Lp_l")
    a("Lp_done:\n  s_endpgm")
    s=s.replace('.amdgcn_target','; @launch kernel=pr_kernel grid=(1,1,1) block=(64,1,1) lds=0\n.amdgcn_target')
    s=s.replace('.section .rodata,"a"',"\n".join(b)+'\n.section .rodata,"a"')
    s+=".p2align 6\n"+kd("pr_kernel",16,32)+"\n"
    return s
```

```python
import sys,gc2,probe,re
from common import NAME
def mk(tag,names,**P):
    base=gc2.gen(st=1,**P)
    nm=open('names.txt').read().split()
    base=re.sub(r"; @launch grid","; @launch kernel=%s_kernel grid"%NAME,base)
    LB=(16<<20)+32768
    for n in names:
        red=('min','max')
        if n=='zero': i=0; red=('min','min')
        elif n.endswith('_min'): i=nm.index(n[:-4]); red=('min','min')
        else: i=nm.index(n)
        s=probe.add_probe(base,LB,LB+4*i,20,red)
        s=s.replace("v_lshlrev_b32 v1, 6, v0\n  s_mov_b32 s4","v_lshlrev_b32 v1, 8, v0\n  s_mov_b32 s4").replace("s_add_u32 s4, s4, 4096\n  s_add_u32 s5, s5, 4096","s_add_u32 s4, s4, 16384\n  s_add_u32 s5, s5, 16384")
        open('pb_%s_%s.s'%(tag,n),'w').write(s)
if __name__=="__main__":
    kw=dict(x.split('=') for x in sys.argv[3:])
    kw={k:(int(v) if v.lstrip('-').isdigit() else v) for k,v in kw.items()}
    mk(sys.argv[1],sys.argv[2].split(','),**kw)
```

```python
import sys,struct
from common import *
from gc2 import Em

XST=32768; WST=16384; BUF=XST+WST
GLUT=3*BUF; GSCR=GLUT+4096; LDSZ=GSCR+8192
FOFF=0x700000; EOFF=0x900000; AOFF=0x901000; WSZ=0x905000
SX,SQ,SL,SW,SO="s[16:19]","s[20:23]","s[24:27]","s[28:31]","s[32:35]"
ACC=16; PS,QS=0,48
KU=4

def gen(**P):
    g=P.get
    a=Em(); ST=g('st',0); R=g('R',2); LR=R.bit_length()-1
    NS=g('ns',3); SPARE=g('spare',0)
    waux=g('waux','sc1'); laux=g('laux','sc1'); oaux=g('oaux','sc0 sc1')
    names=[]; pnames=[]
    def stamp(n):
        if ST: a("  s_memrealtime s[%d:%d]\n  s_memtime s[%d:%d]"%(64+4*n,65+4*n,66+4*n,67+4*n))
    def lst(nm,names=names,sel='lut,chk0,W0,B0,B1,B2,B3,B8,B13,B15'):
        if ST and nm in g('sn',sel).split(','):
            n=len(names); assert n<11
            a("  s_memrealtime s[%d:%d]"%(80+2*n,81+2*n)); names.append(nm)
    def lout(names,wave):
        a("  s_waitcnt lgkmcnt(0)")
        for n in range(len(names)): a("  v_writelane_b32 v140, s%d, %d"%(80+2*n,n))
        a("  s_cmp_eq_u32 s38, %d\n  s_cbranch_scc0 L_done\n  s_mov_b32 s30, 0x10000000\n  s_lshl_b32 s3, s2, 8\n  s_add_u32 s3, s3, %d\n  v_lshl_add_u32 v9, v2, 2, s3\n  buffer_store_dword v140, v9, s[28:31], 0 offen"%(wave,(16<<20)+32768))
    def load_e(e): e("  s_add_u32 s10, s28, %d\n  s_addc_u32 s11, s29, 0\n  s_load_dwordx2 s[6:7], s[10:11], 0"%EOFF)
    def nonce(e,v=True):
        e("  s_waitcnt lgkmcnt(0)\n  s_mul_i32 s8, s6, 1664525\n  s_mul_i32 s9, s7, 22695477\n  s_add_u32 s8, s8, 1013904223\n  s_add_u32 s9, s9, 1")
        if v: e("  v_mov_b32 v10, s8\n  v_mov_b32 v11, s9")
    def arrive(e):
        e("  s_lshl_b32 s3, s2, 6\n  s_add_u32 s3, s3, %d\n  v_mov_b32 v12, s3\n  s_mov_b64 exec, 1"%AOFF)
        e("  buffer_store_dwordx2 v[10:11], v12, %s, 0 offen sc1\n  s_mov_b64 exec, -1"%SW)
    def taddr(e,scr_s):
        e("  v_and_b32 v1, 1, v3\n  v_lshlrev_b32 v1, 10, v1\n  v_lshl_add_u32 v1, v9, 3, v1\n  v_lshrrev_b32 v6, 1, v3\n  v_lshl_add_u32 v6, v6, 4, v1\n  v_add_u32 v6, %s, v6"%scr_s)
        e("  v_lshl_add_u32 v7, v2, 4, %s"%scr_s)
    def qload(e,Q):
        for i in range(4): e.v("  buffer_load_dwordx4 v[%d:%d], v4, %s, %s offen %s"%(Q+4*i,Q+3+4*i,SQ,"s%d"%(44+i) if i else "0",g('qaux','')),'q')
    def lookup(e,Q,young,O):
        for i in range(4):
            e("  s_waitcnt vmcnt(%d)"%(3-i+young))
            for j in range(4): e("  v_lshl_add_u32 v%d, v%d, 8, v5"%(Q+4*i+j,Q+4*i+j))
            for j in range(4): e("  ds_read_u16 v%d, v%d offset:%d"%(96+4*i+j,Q+4*i+j,(j>>1)*128+(j&1)*2))
        e("  s_waitcnt lgkmcnt(8)")
        for j in range(4): e("  v_lshl_or_b32 v%d, v%d, 16, v%d"%(112+2*j,100+j,96+j))
        for j in range(4):
            e("  s_waitcnt lgkmcnt(3)")
            e("  v_lshl_or_b32 v%d, v%d, 16, v%d"%(113+2*j,108+j,104+j))
            e("  ds_write_b64 v6, v[%d:%d] offset:%d"%(112+2*j,113+2*j,256*j))
        e("  s_waitcnt lgkmcnt(0)")
        for j in range(2): e("  ds_read_b128 v[%d:%d], v7 offset:%d"%(O+4*j,O+3+4*j,1024*j))
    def wstore(e,O,so):
        for j in range(2):
            e("  s_waitcnt lgkmcnt(%d)"%(1-j))
            e("  buffer_store_dwordx4 v[%d:%d], v8, %s, %s offen offset:%d %s"%(O+4*j,O+3+4*j,SW,so,1024*j,waux))
    def flag(e,n,so):
        e("  s_waitcnt vmcnt(%d)\n  s_mov_b64 exec, %d"%(n,(1<<R)-1))
        e("  buffer_store_dwordx2 v[10:11], v14, %s, %s offen %s\n  s_mov_b64 exec, -1"%(SW,so,waux))

    a("  s_cmp_ge_u32 s2, 256\n  s_cbranch_scc1 L_done")
    stamp(0)
    a("  s_load_dwordx2 s[20:21], s[0:1], 8\n  s_load_dwordx2 s[24:25], s[0:1], 16\n  s_load_dwordx2 s[28:29], s[0:1], 40\n  s_load_dwordx2 s[16:17], s[0:1], 0\n  s_load_dwordx2 s[32:33], s[0:1], 24")
    for d,sz in ((16,4194304),(20,14680064),(24,114688),(28,WSZ),(32,14680064)): a("  s_mov_b32 s%d, %d\n  s_mov_b32 s%d, 0x20000"%(d+2,sz,d+3))
    a("  v_lshrrev_b32 v1, 6, v0\n  v_and_b32 v2, 63, v0\n  v_readfirstlane_b32 s38, v1\n  v_and_b32 v3, 31, v0\n  v_bfe_u32 v9, v0, 5, 1")
    for i in range(1,4): a("  s_mov_b32 s%d, %d"%(44+i,i*14336))
    a("  v_mul_u32_u24 v1, %d, v9\n  v_lshl_add_u32 v4, v3, 4, v1"%(4*14336))
    a("  v_lshlrev_b32 v1, 3, v3\n  v_lshl_add_u32 v16, v9, 2, v1\n  v_lshlrev_b32 v5, 2, v3")
    a("  s_cmp_lt_u32 s2, 32\n  s_cbranch_scc1 L_prod")
    if g('ponly',0): a("  s_endpgm")
    a("  s_and_b32 s3, s2, 1\n  s_lshl_b32 s3, s3, 2\n  s_bfe_u32 s36, s2, 0x20003\n  s_add_u32 s36, s36, s3")
    a("  s_bfe_u32 s3, s2, 0x20001\n  s_mul_i32 s3, s3, 7\n  s_lshr_b32 s37, s2, 5\n  s_add_u32 s37, s37, s3\n  s_sub_u32 s37, s37, 1")
    a("  s_and_b32 s39, s38, 3\n  s_cmp_ge_u32 s38, 4\n  s_cbranch_scc1 L_loader")

    c=a
    c("  s_lshl_b32 s52, s36, 2\n  s_add_u32 s52, s52, s38\n  s_mul_i32 s53, s52, %d\n  s_lshl_b32 s54, s37, 9\n  s_add_u32 s53, s53, s54\n  v_add_u32 v4, s53, v4"%(8*14336))
    c("  s_waitcnt lgkmcnt(0)")
    qload(c,32)
    load_e(c)
    c("  v_add_u32 v5, %d, v5\n  s_lshl_b32 s53, s38, 11\n  s_add_u32 s53, s53, %d"%(GLUT,GSCR))
    taddr(c,"s53")
    c("  s_lshl_b32 s53, s37, 18\n  s_lshl_b32 s54, s52, 11\n  s_add_u32 s53, s53, s54\n  v_lshl_add_u32 v8, v2, 4, s53")
    c("  s_lshl_b32 s53, s37, 6\n  s_lshr_b32 s54, s52, 1\n  s_add_u32 s53, s53, s54\n  s_lshl_b32 s53, s53, %d\n  s_and_b32 s54, s52, 1\n  s_lshl_b32 s54, s54, 3\n  s_add_u32 s53, s53, s54\n  s_add_u32 s53, s53, %d\n  v_lshl_add_u32 v14, v2, 7, s53"%(7+LR,FOFF))
    c("  v_and_b32 v3, 15, v2\n  v_lshrrev_b32 v9, 4, v2")
    c("  v_lshrrev_b32 v1, 1, v3\n  v_xor_b32 v1, v1, v9\n  v_lshlrev_b32 v1, 4, v1\n  v_lshl_add_u32 v144, v3, 7, v1\n  s_lshl_b32 s54, s38, 13\n  v_add_u32 v144, s54, v144\n  v_xor_b32 v145, 64, v144")
    c("  v_lshlrev_b32 v1, 11, v9\n  v_lshl_add_u32 v146, v3, 4, v1\n  v_add_u32 v146, %d, v146"%XST)
    c("  s_lshl_b32 s52, s36, 8\n  s_lshl_b32 s53, s38, 6\n  s_add_u32 s52, s52, s53\n  s_mul_i32 s52, s52, 7168\n  s_lshl_b32 s53, s37, 8\n  s_add_u32 s52, s52, s53")
    c("  v_mul_u32_u24 v1, 28672, v9\n  v_lshl_add_u32 v1, v3, 4, v1\n  v_add_u32 v147, s52, v1")
    nonce(c)
    c("  s_barrier")
    lookup(c,32,0,148); wstore(c,148,"0")
    for k in range(16): c("  s_mov_b32 s%d, %d"%(44+k,((k>>2)*16+(k&3))*7168))
    c("  v_mov_b32 v5, v144\n  v_mov_b32 v6, v145\n  v_mov_b32 v7, v146")
    for r in range(128): c("  v_mov_b32 v%d, 0"%(ACC+r))
    flag(c,0,"0")
    c("  s_mov_b32 s60, 0\n  s_mov_b32 s61, 0")
    if g('prio',0): c("  s_setprio 1")
    def frag(setb,kind,n):
        b=setb+(4*n if kind=='x' else 16+4*n)
        return "a[%d:%d]"%(b,b+3)
    def reads(setb,ks,ms=(0,1,2,3),vx=5,vw=7):
        xs=["  ds_read_b128 %s, v%d offset:%d"%(frag(setb,'x',i),vx+ks,2048*i) for i in ms]
        ws=["  ds_read_b128 %s, v%d offset:%d"%(frag(setb,'w',t),vw,ks*4*2048+256*t) for t in range(8)]
        return [ws[0]]+xs+ws[1:]
    def block(setb,fill,ms=(0,1,2,3),imajor=False):
        order=[(t,i) for i in ms for t in range(8)] if imajor else [(t,i) for t in range(8) for i in ms]
        for n,(t,i) in enumerate(order):
            acc=ACC+(i*8+t)*4
            c("  v_mfma_f32_16x16x32_bf16 v[%d:%d], %s, %s, v[%d:%d]"%(acc,acc+3,frag(setb,'x',i),frag(setb,'w',t),acc,acc+3))
            for x in fill.get(n,[]): c(x)
    def spread(items,first,step,fill=None):
        fill={} if fill is None else fill
        for k,x in enumerate(items): fill.setdefault(first+k*step,[]).append(x)
        return fill
    def even(items,n,fill,first=0):
        for k,x in enumerate(items): fill.setdefault(first+k*n//len(items),[]).append(x)
        return fill
    tsel=[0]
    def cvst(i,r):
        tb=148+4*(tsel[0]%3); tsel[0]+=1
        L=["  v_cvt_pk_bf16_f32 v%d, v%d, v%d"%(tb+p,ACC+(i*8+2*p)*4+r,ACC+(i*8+2*p+1)*4+r) for p in range(4)]
        L.append("  buffer_store_dwordx4 v[%d:%d], v147, %s, s%d offen %s"%(tb,tb+3,SO,44+i*4+r,oaux))
        return L
    stamp(1)
    c("  s_barrier")
    stamp(2)
    for r in reads(PS,0): c(r)
    c("  s_cmp_eq_u32 s38, 0\n  s_cbranch_scc0 L_c0")
    arrive(c)
    c("L_c0:\n  s_waitcnt lgkmcnt(0)")
    NLOOP=15 if NS==0 else 15-NS
    f1={1:["  s_add_u32 s60, s60, %d"%BUF],3:["  s_cmp_eq_u32 s60, %d"%(3*BUF)],5:["  s_cselect_b32 s60, 0, s60\n  s_add_u32 s61, s61, 1"]}
    f2={0:["  v_add_u32 v7, s60, v146\n  v_add_u32 v5, s60, v144"],2:["  v_add_u32 v6, s60, v145\n  s_cmp_lt_u32 s61, %d"%NLOOP]}
    c(".p2align 6\nL_c:")
    block(PS,spread(reads(QS,1),1,2,dict(f1)))
    c("  s_waitcnt lgkmcnt(0)\n  s_barrier")
    block(QS,spread(reads(PS,0),1,2,dict(f2)))
    c("  s_waitcnt lgkmcnt(0)\n  s_cbranch_scc1 L_c")
    stamp(3)
    if NS==0:
        block(PS,spread(reads(QS,1),1,2))
        c("  s_waitcnt lgkmcnt(0)\n  s_nop 0")
        block(QS,{},imajor=True)
        stamp(4)
        for i in range(4):
            for r in range(4):
                for x in cvst(i,r): c(x)
    else:
        H1,H2=(0,1),(2,3)
        S0=16-NS
        areg={0:(144,146),1:(8,10),2:(11,13)}
        setup=[]
        for b in (1,2):
            vx,vw=areg[b]
            setup+=["  v_add_u32 v%d, %d, v144"%(vx,b*BUF),"  v_add_u32 v%d, %d, v145"%(vx+1,b*BUF),"  v_add_u32 v%d, %d, v146"%(vw,b*BUF)]
        def rd(setb,s,ks,ms): return reads(setb,ks,ms,*areg[s%3])
        block(PS,spread(setup,2,2,spread(reads(QS,1),1,2)))
        c("  s_waitcnt lgkmcnt(0)\n  s_barrier")
        block(QS,spread(rd(PS,S0,0,H1),1,2))
        c("  s_waitcnt lgkmcnt(0)\n  s_nop 0")
        seq=[(s,ks,H) for H in (H1,H2) for s in range(S0,16) for ks in (0,1)]
        st1=sum([cvst(i,r) for i in H1 for r in range(4)],[])
        npart=min(2*NS-1,g('np',4)); per=(8+npart-1)//npart*5
        tl=cvst(2,0)+cvst(2,1)+cvst(2,2)+cvst(2,3)+cvst(3,0)+cvst(3,1)+cvst(3,2)+cvst(3,3)
        for n,(s,ks,H) in enumerate(seq):
            setb=PS if n%2==0 else QS; oth=QS if n%2==0 else PS
            f={}
            if n+1<len(seq):
                s2,k2,Hn=seq[n+1]
                spread(rd(oth,s2,k2,Hn),0,1,f)
            if H==H2:
                k=n-2*NS
                part=st1[k*per:(k+1)*per]
                if part: even(part,15,f,1 if k else 2) if k else even(part,13,f,2)
            last=(n==len(seq)-1)
            if last: f.setdefault(15,[]).extend(tl[:0])
            block(setb,f,H,imajor=(last or n==2*NS-1))
            if last: break
            nb = (H==H1 and ks==0 and s<15)
            c("  s_waitcnt lgkmcnt(0)\n  "+("s_barrier" if nb else "s_nop 0"))
        stamp(4)
        for x in tl: c(x)
    if ST:
        stamp(5)
        c("  s_waitcnt vmcnt(0)")
        stamp(6)
        c("  s_waitcnt lgkmcnt(0)\n  s_cmp_eq_u32 s38, 0\n  s_cbranch_scc0 L_done\n  s_mov_b32 s30, 0x10000000")
        for n in range(7): c("  v_writelane_b32 v8, s%d, %d\n  v_writelane_b32 v8, s%d, %d"%(64+4*n,2*n,66+4*n,2*n+1))
        c("  s_lshl_b32 s3, s2, 6\n  s_add_u32 s3, s3, %d\n  v_lshl_add_u32 v9, v2, 2, s3\n  v_cmp_gt_u32 vcc, 16, v2\n  s_and_saveexec_b64 s[60:61], vcc\n  buffer_store_dword v8, v9, s[28:31], 0 offen"%((16<<20)+16384))
    c("  s_endpgm")

    l=Em(a.o)
    l("L_loader:")
    l("  s_mul_i32 s53, s39, 28672\n  s_lshl_b32 s54, s37, 8\n  s_add_u32 s53, s53, s54\n  v_add_u32 v21, s53, v16\n  s_lshl_b32 s54, s39, 10\n  s_add_u32 m0, s54, %d"%GLUT)
    l("  v_lshrrev_b32 v20, 3, v2\n  v_lshlrev_b32 v20, 11, v20\n  v_lshrrev_b32 v1, 4, v2\n  v_xor_b32 v1, v1, v2\n  v_and_b32 v1, 7, v1\n  v_lshl_add_u32 v20, v1, 4, v20")
    l("  s_lshl_b32 s52, s36, 19\n  s_lshl_b32 s53, s39, 17\n  s_add_u32 s53, s52, s53\n  v_add_u32 v16, s53, v20\n  v_xor_b32 v17, 64, v16")
    l("  v_add_u32 v18, %d, v16\n  v_add_u32 v19, %d, v17\n  v_add_u32 v17, %d, v17\n  s_lshl_b32 s60, s39, 13"%(2*15360,3*15360,15360))
    l("  s_mov_b32 s45, %d\n  s_mov_b32 s46, %d\n  s_mov_b32 s47, %d"%(7168-256,2*(7168-256),3*(7168-256)))
    l("  s_waitcnt lgkmcnt(0)")
    if ST: names.append("start"); l("  s_mov_b32 s80, s64")
    for k in range(4): l.v("  buffer_load_dword v21, %s, %s offen offset:%d lds"%(SL,"s%d"%(44+k) if k else "0",256*k),'lut')
    def xdma(s):
        for h in range(2):
            l("  s_add_u32 m0, s60, %d\n  s_mov_b32 s62, %d"%((s%3)*BUF+4096*h,s*128+65536*h))
            for i in range(4): l.v("  buffer_load_dwordx4 v%d, %s, s62 offen offset:%d lds"%(16+i,SX,1024*i),'x%d'%s)
    def wdma(s):
        l("  s_add_u32 m0, s61, %d\n  s_mov_b32 s62, %d"%((s%3)*BUF,s*WST))
        for i in range(4): l.v("  buffer_load_dwordx4 v20, %s, s62 offen offset:%d %s lds"%(SW,1024*i,laux),'W%d'%s)
    def poll(s): l("  s_load_dwordx4 s[64:67], s[4:5], %d glc"%(s*512*R))
    def check(s):
        if g('nopoll',0): return
        l("  s_mov_b32 s63, 0\nL_sp%d:"%s)
        l("  s_waitcnt lgkmcnt(0)\n  s_xor_b64 s[10:11], s[64:65], s[8:9]\n  s_xor_b64 s[14:15], s[66:67], s[8:9]\n  s_or_b64 s[10:11], s[10:11], s[14:15]\n  s_cbranch_scc0 L_ok%d"%s)
        poll(s)
        l("  s_add_u32 s63, s63, 1\n  s_cmp_lt_u32 s63, 20000\n  s_cbranch_scc1 L_sp%d\n  s_waitcnt lgkmcnt(0)\nL_ok%d:"%(s,s))
    load_e(l)
    XE=g('xe',1)
    if XE: xdma(0)
    l("  s_lshl_b32 s53, s37, 18\n  s_lshl_b32 s54, s39, 12\n  s_add_u32 s53, s53, s54\n  v_lshl_add_u32 v20, v2, 4, s53\n  s_add_u32 s61, s54, %d"%XST)
    TD=g('td',5)
    l("  s_lshl_b32 s53, s37, 2\n  s_add_u32 s53, s53, s39\n  s_mul_i32 s53, s53, 3\n  s_min_u32 s53, s53, 253\n  s_lshl_b32 s53, s53, 11\n  s_add_u32 s53, s53, s52")
    l("  s_add_u32 s12, s16, s53\n  s_addc_u32 s13, s17, 0")
    def touch(s):
        if g('touch',1) and s<16:
            for r in range(3):
                for h in range(2): l("  s_load_dword s%d, s[12:13], %d"%(68+2*r+h,r*2048+s*128+64*h))
    l("  s_lshl_b32 s53, s37, %d\n  s_lshl_b32 s54, s39, %d\n  s_add_u32 s53, s53, s54\n  s_and_b32 s54, s36, %d\n  s_lshl_b32 s54, s54, 7\n  s_add_u32 s53, s53, s54\n  s_add_u32 s53, s53, %d"%(13+LR,7+LR,R-1,FOFF))
    l("  s_add_u32 s4, s28, s53\n  s_addc_u32 s5, s29, 0")
    IL=g('il',0)
    nonce(l,True)
    touch(1); touch(2)
    if IL is not None and IL>=-1:
        l("  s_lshr_b32 s53, s36, 1\n  s_mul_i32 s53, s53, 24\n  s_and_b32 s54, s36, 1\n  s_lshl_b32 s54, s54, 2\n  s_add_u32 s53, s53, s54\n  s_add_u32 s53, s53, s39\n  s_add_u32 s52, s53, 48")
        l("  s_mul_i32 s53, s52, %d\n  s_lshl_b32 s54, s37, 9\n  s_add_u32 s53, s53, s54\n  v_add_u32 v4, s53, v4"%(8*14336))
        l("  v_add_u32 v5, %d, v5\n  s_lshl_b32 s53, s39, 11\n  s_add_u32 s53, s53, %d"%(GLUT,GSCR))
        taddr(l,"s53")
        l("  s_lshl_b32 s53, s37, 18\n  s_lshl_b32 s54, s52, 11\n  s_add_u32 s53, s53, s54\n  v_lshl_add_u32 v8, v2, 4, s53")
        l("  s_lshl_b32 s53, s37, 6\n  s_lshr_b32 s54, s52, 1\n  s_add_u32 s53, s53, s54\n  s_lshl_b32 s53, s53, %d\n  s_and_b32 s54, s52, 1\n  s_lshl_b32 s54, s54, 3\n  s_add_u32 s53, s53, s54\n  s_add_u32 s53, s53, %d\n  v_lshl_add_u32 v14, v2, 7, s53"%(7+LR,FOFF))
        for i in range(1,4): l("  s_mov_b32 s%d, %d"%(44+i,i*14336))
    l.wait('lut')
    l("  s_barrier")
    lst('lut')
    if not XE: xdma(0)
    for j in range(3,TD): touch(j)
    l("  s_waitcnt lgkmcnt(0)")
    if g('x1',1): xdma(1)
    poll(0); check(0); lst('chk0')
    wdma(0)
    poll(1)
    if not g('x1',1): xdma(1)
    check(1); wdma(1)
    STAG=g('stag',0)
    if STAG: l("  s_lshr_b32 s57, s36, 1\n  s_mul_i32 s57, s57, %d"%STAG)
    def shot(i):
        for ph in (2,1,0):
            ks=[k for k in range(4) if IL+k*STAG+ph==i] if STAG else ([0] if IL+ph==i else [])
            if not ks: continue
            e=Em(a.o)
            if STAG: l("  s_cmp_eq_u32 s57, %d\n  s_cbranch_scc0 L_sh%d_%d"%(ks[0]*STAG,i+1,ph))
            if ph==0: qload(e,32)
            if ph==1: lookup(e,32,12,120); wstore(e,120,"0")
            if ph==2: flag(e,12,"0")
            if STAG: l("L_sh%d_%d:"%(i+1,ph))
    shot(-1)
    poll(2)
    l.wait('W0')
    lst('W0')
    l("  s_barrier")
    lst('B0')
    for i in range(14):
        s=i+2
        xdma(s)
        check(s)
        if s+1<16: poll(s+1)
        wdma(s)
        shot(i)
        touch(i+TD)
        l.wait('W%d'%(s-1))
        l("  s_barrier")
        lst('B%d'%(s-1))
    l.wait('W15')
    l("  s_barrier")
    lst('B15')
    if ST: lout(names,g('lw',4))
    l("  s_endpgm")

    p=Em(a.o)
    SCR=32768
    p("L_prod:")
    if g('nopoll',0) or not SPARE: p("  s_cmp_ge_u32 s2, %d\n  s_cbranch_scc1 L_done"%(0 if g('nopoll',0) else 28))
    SHOT=IL>=-1
    if SHOT: assert not SPARE
    NP=8 if SHOT else 16-KU-SPARE
    p("  s_mov_b32 s36, s2\n  s_mov_b32 s37, %d\n  s_mov_b32 s56, %d\n  s_mov_b32 s57, %d\n  s_mov_b32 s58, %d\n  s_mov_b32 s59, 0\n  s_mov_b32 s55, %d\n  s_mov_b32 s51, 1"%(KU,64*14336,WST,512*R,NP))
    if SPARE:
        p("  s_cmp_lt_u32 s2, 28\n  s_cbranch_scc1 L_pp")
        p("  s_sub_u32 s36, s2, 28\n  s_mul_i32 s36, s36, 7\n  s_mov_b32 s37, 15\n  s_mov_b32 s56, 512\n  s_mov_b32 s57, %d\n  s_mov_b32 s58, %d\n  s_mov_b32 s59, 4096\n  s_mov_b32 s55, 7\n  s_mov_b32 s51, 7\n  s_branch L_pq"%(16*WST,64*128*R))
        p("L_pp:\n  s_mov_b32 s22, %d\nL_pq:"%(15*64*14336))
    p("  s_lshl_b32 s52, s37, 3\n  s_add_u32 s52, s52, s38\n  s_mul_i32 s53, s52, %d\n  s_lshl_b32 s54, s36, 9\n  s_add_u32 s53, s53, s54\n  v_add_u32 v4, s53, v4"%(8*14336))
    p("  s_mul_i32 s53, s38, 14336\n  s_lshl_b32 s54, s36, 8\n  s_add_u32 s53, s53, s54\n  v_add_u32 v16, s53, v16\n  s_lshl_b32 m0, s38, 9\n  s_mov_b32 s50, %d\n  v_mov_b32 v15, 0x7ff00000"%(7168-256))
    p("  s_waitcnt lgkmcnt(0)")
    if ST: pnames.append("start"); p("  s_mov_b32 s80, s64")
    p("L_pl:\n  buffer_load_dword v16, %s, 0 offen lds\n  buffer_load_dword v16, %s, s50 offen offset:256 lds"%(SL,SL))
    p("  s_add_u32 m0, m0, 4096\n  v_add_u32 v16, 256, v16\n  s_sub_u32 s51, s51, 1\n  s_cmp_lg_u32 s51, 0\n  s_cbranch_scc1 L_pl")
    p.vm.append('lut')
    ND=2
    for b in range(ND):
        qload(p,32+16*b); p("  v_add_u32 v4, s56, v4")
        if SHOT and b==1: p("  v_add_u32 v4, s56, v4")
        for k in range(2 if b<ND-1 else 0): p.v("  buffer_load_dword v17, v15, %s, 0 offen"%SQ,'dummy')
    load_e(p)
    p("  s_lshl_b32 s53, s38, 11\n  s_add_u32 s53, s53, %d"%SCR)
    taddr(p,"s53")
    p("  s_lshl_b32 s53, s36, 18\n  s_lshl_b32 s54, s52, 11\n  s_add_u32 s53, s53, s54\n  v_lshl_add_u32 v8, v2, 4, s53")
    p("  s_lshl_b32 s53, s36, 6\n  s_lshr_b32 s54, s52, 1\n  s_add_u32 s53, s53, s54\n  s_lshl_b32 s53, s53, %d\n  s_and_b32 s54, s52, 1\n  s_lshl_b32 s54, s54, 3\n  s_add_u32 s53, s53, s54\n  s_add_u32 s53, s53, %d\n  v_lshl_add_u32 v14, v2, 7, s53"%(7+LR,FOFF))
    nonce(p)
    p("  s_mov_b32 s60, 0\n  s_mov_b32 s61, 0\n  s_mov_b32 s62, 0")
    p.wait('lut')
    p("  s_barrier")
    lst('lut',pnames,'lut')
    p("L_p:")
    for b in range(ND):
        lookup(p,32+16*b,6*(ND-1),120+8*b)
        p("  s_cmp_eq_u32 s62, 0\n  s_cbranch_scc1 L_pa%d"%b); flag(p,4,"s61"); p("  s_add_u32 s61, s61, s58"+("\n  s_add_u32 s61, s61, s58" if SHOT and b==0 else "")+"\nL_pa%d:"%b)
        wstore(p,120+8*b,"s60")
        qload(p,32+16*b)
        p("  v_add_u32 v4, s56, v4\n  v_add_u32 v5, s59, v5\n  s_add_u32 s62, s62, 1\n  s_add_u32 s60, s60, s57")
        if SHOT and b==1: p("  v_add_u32 v4, s56, v4\n  s_add_u32 s60, s60, s57")
        if ST:
            for it in (0,1,2,5,6,7):
                if it%ND==b:
                    n=len(pnames)
                    p("  s_cmp_eq_u32 s62, %d\n  s_cbranch_scc0 L_ps%d\n  s_memrealtime s[%d:%d]\nL_ps%d:"%(it+1,n,80+2*n,81+2*n,n)); pnames.append('s%d'%it)
        p("  s_cmp_lt_u32 s62, s55\n  s_cbranch_scc%d %s"%((1,"L_p") if b==ND-1 else (0,"L_pe")))
    p("L_pe:")
    flag(p,4,"s61")
    lst('end',pnames,'end')
    p("  s_cmp_eq_u32 s38, 0\n  s_cbranch_scc0 L_pz")
    arrive(p)
    p("  s_cmp_eq_u32 s2, 0\n  s_cbranch_scc0 L_pz\n  s_mov_b32 s63, 0\n  v_lshlrev_b32 v12, 6, v2\n  v_add_u32 v12, %d, v12"%AOFF)
    p("L_pw:")
    if not SPARE: p("  v_mov_b32 v13, 28\n  v_max_u32 v13, v13, v2")
    for k in range(4): p("  s_mov_b32 s53, %d\n  buffer_load_dwordx2 v[%d:%d], v12, %s, s53 offen sc1"%(4096*k,20+2*k,21+2*k,SW))
    p("  s_add_u32 s63, s63, 1\n  s_waitcnt vmcnt(0)\n  v_cmp_ne_u64 s[52:53], v[20:21], v[10:11]")
    if not SPARE: p("  s_and_b32 s52, s52, 0x0fffffff")
    for k in range(1,4): p("  v_cmp_ne_u64 vcc, v[%d:%d], v[10:11]\n  s_or_b64 s[52:53], s[52:53], vcc"%(20+2*k,21+2*k))
    p("  s_cbranch_scc0 L_pv\n  s_cmp_lt_u32 s63, %d\n  s_cbranch_scc1 L_pw"%(1 if g('ponly',0) else 20000))
    p("L_pv:\n  v_mov_b32 v12, %d\n  s_mov_b64 exec, 1\n  buffer_store_dwordx2 v[10:11], v12, %s, 0 offen sc1\n  s_mov_b64 exec, -1\nL_pz:"%(EOFF,SW))
    if ST:
        lout(pnames,0)
        open('names.txt','w').write(" ".join(names)+"\n"+" ".join(pnames))
    p("L_done:\n  s_endpgm")
    return single(a.text(),256,512,LDSZ,160+96,102,160)
if __name__=="__main__":
    kw=dict(x.split('=') for x in sys.argv[1:])
    kw={k:(int(v) if v.lstrip('-').isdigit() else v) for k,v in kw.items()}
    print(gen(**kw))
```

```python
import sys,struct
from common import *
from gc2 import Em

XST=32768; WST=16384; BUF=XST+WST
GLUT=3*BUF; LDSZ=GLUT+4096
FOFF=0x700000; EOFF=0x900000; AOFF=0x901000; WSZ=0x905000
SX,SQ,SL,SW,SO="s[16:19]","s[20:23]","s[24:27]","s[28:31]","s[32:35]"
ACC=16; PS,QS=0,48
KU=8

def gen(**P):
    g=P.get
    a=Em(); ST=g('st',0); R=g('R',2); LR=R.bit_length()-1
    NS=g('ns',3); SPARE=g('spare',0)
    waux=g('waux','sc1'); laux=g('laux','sc1'); oaux=g('oaux','sc0 sc1')
    names=[]; pnames=[]
    def stamp(n,alt=None):
        if g('cs',0): n=alt
        if ST and n is not None: a("  s_memrealtime s[%d:%d]\n  s_memtime s[%d:%d]"%(64+4*n,65+4*n,66+4*n,67+4*n))
    def lst(nm,names=names,sel='lut,fl,B0,chk1,B1,B2,B3,B8,B13,B15'):
        if ST and nm in g('sn',sel).split(','):
            n=len(names); assert n<11
            a("  s_memrealtime s[%d:%d]"%(80+2*n,81+2*n)); names.append(nm)
    def lout(names,wave):
        a("  s_waitcnt lgkmcnt(0)")
        for n in range(len(names)): a("  v_writelane_b32 v140, s%d, %d"%(80+2*n,n))
        a("  s_cmp_eq_u32 s38, %d\n  s_cbranch_scc0 L_done\n  s_mov_b32 s30, 0x10000000\n  s_lshl_b32 s3, s2, 8\n  s_add_u32 s3, s3, %d\n  v_lshl_add_u32 v9, v2, 2, s3\n  buffer_store_dword v140, v9, s[28:31], 0 offen"%(wave,(16<<20)+32768))
    def load_e(e): e("  s_add_u32 s10, s28, %d\n  s_addc_u32 s11, s29, 0\n  s_load_dwordx2 s[6:7], s[10:11], 0"%EOFF)
    def nonce(e,v=True):
        e("  s_waitcnt lgkmcnt(0)\n  s_mul_i32 s8, s6, 1664525\n  s_mul_i32 s9, s7, 22695477\n  s_add_u32 s8, s8, 1013904223\n  s_add_u32 s9, s9, 1")
        if v: e("  v_mov_b32 v10, s8\n  v_mov_b32 v11, s9")
    def arrive(e):
        e("  s_lshl_b32 s3, s2, 6\n  s_add_u32 s3, s3, %d\n  v_mov_b32 v12, s3\n  s_mov_b64 exec, 1"%AOFF)
        e("  buffer_store_dwordx2 v[10:11], v12, %s, 0 offen sc1\n  s_mov_b64 exec, -1"%SW)
    def taddr(e,scr_s):
        e("  v_and_b32 v1, 1, v3\n  v_lshlrev_b32 v1, 10, v1\n  v_lshl_add_u32 v1, v9, 3, v1\n  v_lshrrev_b32 v6, 1, v3\n  v_lshl_add_u32 v6, v6, 4, v1\n  v_add_u32 v6, %s, v6"%scr_s)
        e("  v_lshl_add_u32 v7, v2, 4, %s"%scr_s)
    def qload(e,Q):
        for i in range(4): e.v("  buffer_load_dwordx4 v[%d:%d], v4, %s, %s offen %s"%(Q+4*i,Q+3+4*i,SQ,"s%d"%(44+i) if i else "0",g('qaux','')),'q')
    def lookup(e,Q,young,O,dma=None):
        for i in range(4):
            e("  s_waitcnt vmcnt(%d)"%(3-i+young+(i if dma else 0)))
            for j in range(4): e("  v_lshl_add_u32 v%d, v%d, 8, v5"%(Q+4*i+j,Q+4*i+j))
            for j in range(4): e("  ds_read_u16 v%d, v%d offset:%d"%(96+4*i+j,Q+4*i+j,(j>>1)*128+(j&1)*2))
            if dma: e.v(dma[i],'x0')
        e("  s_waitcnt lgkmcnt(8)")
        for j in range(4): e("  v_lshl_or_b32 v%d, v%d, 16, v%d"%(112+2*j,100+j,96+j))
        for j in range(4):
            e("  s_waitcnt lgkmcnt(3)")
            e("  v_lshl_or_b32 v%d, v%d, 16, v%d"%(113+2*j,108+j,104+j))
            e("  ds_write_b64 v6, v[%d:%d] offset:%d"%(112+2*j,113+2*j,256*j))
        e("  s_waitcnt lgkmcnt(0)")
        for j in range(2): e("  ds_read_b128 v[%d:%d], v7 offset:%d"%(O+4*j,O+3+4*j,1024*j))
    def wstore(e,O,so):
        for j in range(2):
            e("  s_waitcnt lgkmcnt(%d)"%(1-j))
            e("  buffer_store_dwordx4 v[%d:%d], v8, %s, %s offen offset:%d %s"%(O+4*j,O+3+4*j,SW,so,1024*j,waux))
    def flag(e,n,so):
        e("  s_waitcnt vmcnt(%d)\n  s_mov_b64 exec, %d"%(n,(1<<R)-1))
        e("  buffer_store_dwordx2 v[10:11], v14, %s, %s offen %s\n  s_mov_b64 exec, -1"%(SW,so,waux))

    def task_addr(e):
        e("  s_lshl_b32 s53, s38, 11\n  s_add_u32 s53, s53, %d"%XST)
        taddr(e,"s53")
        e("  s_lshl_b32 s53, s37, 18\n  s_lshl_b32 s54, s52, 11\n  s_add_u32 s53, s53, s54\n  v_lshl_add_u32 v8, v2, 4, s53")
        e("  s_lshl_b32 s53, s37, 6\n  s_lshr_b32 s54, s52, 1\n  s_add_u32 s53, s53, s54\n  s_lshl_b32 s53, s53, %d\n  s_and_b32 s54, s52, 1\n  s_lshl_b32 s54, s54, 3\n  s_add_u32 s53, s53, s54\n  s_add_u32 s53, s53, %d\n  v_lshl_add_u32 v14, v2, 7, s53"%(7+LR,FOFF))
    def sig(e,j,dst,sh,add=0):
        if j>=8: e("  s_mov_b32 %s, %d"%(dst,(j<<sh)+add)); return
        if g('rot',1)==0: e("  s_add_u32 %s, s36, %d\n  s_and_b32 %s, %s, 7\n  s_lshl_b32 %s, %s, %d"%(dst,j,dst,dst,dst,dst,sh))
        elif j==0: e("  s_lshl_b32 %s, s36, %d"%(dst,sh))
        elif j<5: e("  s_add_u32 %s, s40, %d\n  s_lshl_b32 %s, %s, %d"%(dst,j-1,dst,dst,sh))
        else: e("  s_xor_b32 %s, s40, %d\n  s_cmp_ge_u32 %s, s36\n  s_addc_u32 %s, %s, 0\n  s_lshl_b32 %s, %s, %d"%(dst,4+j-5,dst,dst,dst,dst,dst,sh))
        if add: e("  s_add_u32 %s, %s, %d"%(dst,dst,add))
    def touch_addr(e):
        e("  s_lshl_b32 s53, s37, 2\n  s_add_u32 s53, s53, s39\n  s_mul_i32 s53, s53, 3\n  s_min_u32 s53, s53, 253\n  s_lshl_b32 s54, s36, 8\n  s_add_u32 s53, s53, s54\n  s_lshl_b32 s53, s53, 11")
        e("  s_add_u32 s12, s16, s53\n  s_addc_u32 s13, s17, 0")
    def touch(e,j,d=68):
        if g('touch',1) and j<16:
            sig(e,j,"s58",7)
            for r in range(3):
                for h in range(2): e("  s_load_dword s%d, s[12:13], s58 offset:%d"%(d+2*r+h,r*2048+64*h))

    def xdma(s,l):
        sig(l,s,"s41",7)
        for h in range(2):
            l("  s_add_u32 m0, s60, %d"%((s%3)*BUF+4096*h)+("\n  s_add_u32 s41, s41, 65536" if h else "\n  s_nop 0"))
            for i in range(4): l.v("  buffer_load_dwordx4 v%d, %s, s41 offen offset:%d lds"%(16+i,SX,1024*i),'x%d'%s)
    CX=g('cx',0) and not g('xi',1)
    a("  s_cmp_ge_u32 s2, 256\n  s_cbranch_scc1 L_done")
    stamp(0,0)
    a("  s_load_dwordx2 s[24:25], s[0:1], 16\n  s_load_dwordx2 s[20:21], s[0:1], 8\n  s_load_dwordx2 s[28:29], s[0:1], 40\n  s_load_dwordx2 s[16:17], s[0:1], 0\n  s_load_dwordx2 s[32:33], s[0:1], 24")
    if not SPARE and not g('xp',1): a("  s_sub_u32 s3, s2, 28\n  s_cmp_lt_u32 s3, 4\n  s_cbranch_scc1 L_done")
    for d,sz in ((16,4194304),(20,14680064),(24,114688),(28,WSZ),(32,14680064)): a("  s_mov_b32 s%d, %d\n  s_mov_b32 s%d, 0x20000"%(d+2,sz,d+3))
    a("  v_lshrrev_b32 v1, 6, v0\n  v_and_b32 v2, 63, v0\n  v_readfirstlane_b32 s38, v1\n  v_and_b32 v3, 31, v0\n  v_bfe_u32 v9, v0, 5, 1")
    for i in range(1,4): a("  s_mov_b32 s%d, %d"%(44+i,i*14336))
    a("  v_mul_u32_u24 v1, %d, v9\n  v_lshl_add_u32 v4, v3, 4, v1"%(4*14336))
    a("  v_lshlrev_b32 v1, 3, v3\n  v_lshl_add_u32 v16, v9, 2, v1\n  v_lshlrev_b32 v5, 2, v3")
    a("  s_and_b32 s3, s2, 1\n  s_lshl_b32 s3, s3, 2\n  s_bfe_u32 s36, s2, 0x20003\n  s_add_u32 s36, s36, s3")
    a("  s_bfe_u32 s3, s2, 0x20001\n  s_mul_i32 s3, s3, 7\n  s_lshr_b32 s37, s2, 5\n  s_add_u32 s37, s37, s3\n  s_sub_u32 s37, s37, 1")
    a("  s_cmp_lt_u32 s2, 32\n  s_cselect_b32 s36, 8, s36\n  s_cselect_b32 s37, s2, s37\n  s_cselect_b32 s51, 0, %d"%GLUT)
    if not SPARE and g('xp',1): a("  s_min_u32 s37, s37, 27")
    if SPARE: a("  s_sub_u32 s3, s2, 28\n  s_mul_i32 s53, s3, 7\n  s_cmp_lt_u32 s3, 4\n  s_cselect_b32 s36, 15, s36\n  s_cselect_b32 s37, s53, s37")
    a("  s_lshl_b32 s52, s36, 3\n  s_add_u32 s52, s52, s38\n  s_mul_i32 s53, s52, %d\n  s_lshl_b32 s54, s37, 9\n  s_add_u32 s53, s53, s54\n  v_add_u32 v4, s53, v4"%(8*14336))
    a("  s_mul_i32 s53, s38, 14336\n  s_lshl_b32 s54, s37, 8\n  s_add_u32 s53, s53, s54\n  v_add_u32 v16, s53, v16\n  s_lshl_b32 s53, s38, 9\n  s_add_u32 m0, s53, s51\n  s_mov_b32 s50, %d\n  v_add_u32 v5, s51, v5"%(7168-256))
    a("  s_and_b32 s39, s38, 3\n  s_cmp_lt_u32 s2, 32\n  s_waitcnt lgkmcnt(0)")
    a.v("  buffer_load_dword v16, %s, 0 offen lds"%SL,'lut'); a.v("  buffer_load_dword v16, %s, s50 offen offset:256 lds"%SL,'lut')
    a("  s_cbranch_scc1 L_prod")
    qload(a,32)
    load_e(a)
    task_addr(a); touch_addr(a)
    a("  s_andn2_b32 s40, 4, s36")
    if g('t0',1) and not g('xp',1):
        a("  s_cmp_ge_u32 s38, 4\n  s_cbranch_scc0 L_la"); touch(a,0); a("L_la:")
    a("  v_and_b32 v3, 15, v2\n  v_lshrrev_b32 v9, 4, v2")
    a("  v_lshrrev_b32 v1, 1, v3\n  v_xor_b32 v1, v1, v9\n  v_lshlrev_b32 v1, 4, v1\n  v_lshl_add_u32 v144, v3, 7, v1\n  s_lshl_b32 s54, s38, 13\n  v_add_u32 v144, s54, v144\n  v_xor_b32 v145, 64, v144")
    a("  v_lshlrev_b32 v1, 11, v9\n  v_lshl_add_u32 v146, v3, 4, v1\n  v_add_u32 v146, %d, v146"%XST)
    a("  s_lshl_b32 s52, s36, 8\n  s_lshl_b32 s53, s38, 6\n  s_add_u32 s52, s52, s53\n  s_mul_i32 s52, s52, 7168\n  s_lshl_b32 s53, s37, 8\n  s_add_u32 s52, s52, s53")
    a("  v_mul_u32_u24 v1, 28672, v9\n  v_lshl_add_u32 v1, v3, 4, v1\n  v_add_u32 v147, s52, v1")
    a("  v_lshrrev_b32 v20, 3, v2\n  v_lshlrev_b32 v20, 11, v20\n  v_lshrrev_b32 v1, 4, v2\n  v_xor_b32 v1, v1, v2\n  v_and_b32 v1, 7, v1\n  v_lshl_add_u32 v20, v1, 4, v20")
    a("  s_lshl_b32 s52, s36, 19\n  s_lshl_b32 s53, s39, 17\n  s_add_u32 s53, s52, s53\n  v_add_u32 v16, s53, v20\n  v_xor_b32 v17, 64, v16")
    a("  v_add_u32 v18, %d, v16\n  v_add_u32 v19, %d, v17\n  v_add_u32 v17, %d, v17\n  s_lshl_b32 s60, s39, 13"%(2*15360,3*15360,15360))
    a("  s_lshl_b32 s53, s37, 18\n  s_lshl_b32 s54, s39, 12\n  s_add_u32 s53, s53, s54\n  v_lshl_add_u32 v20, v2, 4, s53\n  s_add_u32 s61, s54, %d"%XST)
    a("  s_lshl_b32 s53, s37, %d\n  s_lshl_b32 s54, s39, %d\n  s_add_u32 s53, s53, s54\n  s_and_b32 s54, s36, %d\n  s_lshl_b32 s54, s54, 7\n  s_add_u32 s53, s53, s54\n  s_add_u32 s53, s53, %d"%(13+LR,7+LR,R-1,FOFF))
    a("  s_add_u32 s4, s28, s53\n  s_addc_u32 s5, s29, 0")
    if ST: names.append("start"); a("  s_mov_b32 s80, s64")
    XI=g('xi',1); XP=g('xp',1)
    if XI:
        sig(a,0,"s41",7)
        a("  s_lshr_b32 s53, s38, 2\n  s_lshl_b32 s54, s53, 16\n  s_add_u32 s41, s41, s54\n  s_lshl_b32 s53, s53, 12\n  s_add_u32 m0, s60, s53")
    nonce(a)
    a.wait('lut')
    a("  s_barrier")
    lst('lut')
    if g('cs',0): stamp(0,1); a("  s_waitcnt vmcnt(0)"); stamp(0,2)
    lookup(a,32,0,148,["  buffer_load_dwordx4 v%d, %s, s41 offen offset:%d lds"%(16+i,SX,1024*i) for i in range(4)] if XI else None)
    wstore(a,148,"0"); a.vm+=['ws','ws']
    a("  s_cmp_ge_u32 s38, 4\n  s_cbranch_scc1 L_loader")

    c=a
    if g('cs',0): stamp(0,3)
    if CX: xdma(0,c)
    if not XP: touch(c,1,92); touch(c,2,92)
    c("  v_mov_b32 v5, v144\n  v_mov_b32 v6, v145\n  v_mov_b32 v7, v146")
    for r in range(128): c("  v_mov_b32 v%d, 0"%(ACC+r))
    flag(c,c.cnt('ws'),"0")
    if g('c3',0) and g('d2',0): touch(c,3,92)
    for k in range(16): c("  s_mov_b32 s%d, %d"%(44+k,((k>>2)*16+(k&3))*7168))
    c("  s_mov_b32 s60, 0\n  s_mov_b32 s61, 0")
    if g('prio',0): c("  s_setprio 1")
    def frag(setb,kind,n):
        b=setb+(4*n if kind=='x' else 16+4*n)
        return "a[%d:%d]"%(b,b+3)
    def reads(setb,ks,ms=(0,1,2,3),vx=5,vw=7):
        xs=["  ds_read_b128 %s, v%d offset:%d"%(frag(setb,'x',i),vx+ks,2048*i) for i in ms]
        ws=["  ds_read_b128 %s, v%d offset:%d"%(frag(setb,'w',t),vw,ks*4*2048+256*t) for t in range(8)]
        return [ws[0]]+xs+ws[1:]
    def block(setb,fill,ms=(0,1,2,3),imajor=False):
        order=[(t,i) for i in ms for t in range(8)] if imajor else [(t,i) for t in range(8) for i in ms]
        for n,(t,i) in enumerate(order):
            acc=ACC+(i*8+t)*4
            c("  v_mfma_f32_16x16x32_bf16 v[%d:%d], %s, %s, v[%d:%d]"%(acc,acc+3,frag(setb,'x',i),frag(setb,'w',t),acc,acc+3))
            for x in fill.get(n,[]): c(x)
    def spread(items,first,step,fill=None):
        fill={} if fill is None else fill
        for k,x in enumerate(items): fill.setdefault(first+k*step,[]).append(x)
        return fill
    def even(items,n,fill,first=0):
        for k,x in enumerate(items): fill.setdefault(first+k*n//len(items),[]).append(x)
        return fill
    tsel=[0]
    def cvst(i,r):
        tb=148+4*(tsel[0]%3); tsel[0]+=1
        L=["  v_cvt_pk_bf16_f32 v%d, v%d, v%d"%(tb+p,ACC+(i*8+2*p)*4+r,ACC+(i*8+2*p+1)*4+r) for p in range(4)]
        L.append("  buffer_store_dwordx4 v[%d:%d], v147, %s, s%d offen %s"%(tb,tb+3,SO,44+i*4+r,oaux))
        return L
    stamp(1,4)
    c("  s_barrier")
    if CX: c("  s_waitcnt vmcnt(1)")
    stamp(2,5)
    for r in reads(PS,0): c(r)
    c("  s_cmp_eq_u32 s38, 0\n  s_cbranch_scc0 L_c0")
    arrive(c)
    c("L_c0:\n  s_waitcnt lgkmcnt(0)")
    NLOOP=15 if NS==0 else 15-NS
    f1={1:["  s_add_u32 s60, s60, %d"%BUF],3:["  s_cmp_eq_u32 s60, %d"%(3*BUF)],5:["  s_cselect_b32 s60, 0, s60\n  s_add_u32 s61, s61, 1"]}
    f2={0:["  v_add_u32 v7, s60, v146\n  v_add_u32 v5, s60, v144"],2:["  v_add_u32 v6, s60, v145\n  s_cmp_lt_u32 s61, %d"%NLOOP]}
    c(".p2align 6\nL_c:")
    block(PS,spread(reads(QS,1),1,2,dict(f1)))
    c("  s_waitcnt lgkmcnt(0)\n  s_barrier")
    block(QS,spread(reads(PS,0),1,2,dict(f2)))
    c("  s_waitcnt lgkmcnt(0)\n  s_cbranch_scc1 L_c")
    stamp(3)
    if NS==0:
        block(PS,spread(reads(QS,1),1,2))
        c("  s_waitcnt lgkmcnt(0)\n  s_nop 0")
        block(QS,{},imajor=True)
        stamp(4)
        for i in range(4):
            for r in range(4):
                for x in cvst(i,r): c(x)
    else:
        H1,H2=(0,1),(2,3)
        S0=16-NS
        areg={0:(144,146),1:(8,10),2:(11,13)}
        setup=[]
        for b in (1,2):
            vx,vw=areg[b]
            setup+=["  v_add_u32 v%d, %d, v144"%(vx,b*BUF),"  v_add_u32 v%d, %d, v145"%(vx+1,b*BUF),"  v_add_u32 v%d, %d, v146"%(vw,b*BUF)]
        def rd(setb,s,ks,ms): return reads(setb,ks,ms,*areg[s%3])
        block(PS,spread(setup,2,2,spread(reads(QS,1),1,2)))
        c("  s_waitcnt lgkmcnt(0)\n  s_barrier")
        block(QS,spread(rd(PS,S0,0,H1),1,2))
        c("  s_waitcnt lgkmcnt(0)\n  s_nop 0")
        seq=[(s,ks,H) for H in (H1,H2) for s in range(S0,16) for ks in (0,1)]
        st1=sum([cvst(i,r) for i in H1 for r in range(4)],[])
        npart=min(2*NS-1,g('np',4)); per=(8+npart-1)//npart*5
        tl=cvst(2,0)+cvst(2,1)+cvst(2,2)+cvst(2,3)+cvst(3,0)+cvst(3,1)+cvst(3,2)+cvst(3,3)
        for n,(s,ks,H) in enumerate(seq):
            setb=PS if n%2==0 else QS; oth=QS if n%2==0 else PS
            f={}
            if n+1<len(seq):
                s2,k2,Hn=seq[n+1]
                spread(rd(oth,s2,k2,Hn),0,1,f)
            if H==H2:
                k=n-2*NS
                part=st1[k*per:(k+1)*per]
                if part: even(part,15,f,1 if k else 2) if k else even(part,13,f,2)
            last=(n==len(seq)-1)
            if last: f.setdefault(15,[]).extend(tl[:0])
            block(setb,f,H,imajor=(last or n==2*NS-1))
            if last: break
            nb = (H==H1 and ks==0 and s<15)
            c("  s_waitcnt lgkmcnt(0)\n  "+("s_barrier" if nb else "s_nop 0"))
        stamp(4)
        for x in tl: c(x)
    if ST:
        stamp(5)
        c("  s_waitcnt vmcnt(0)")
        stamp(6,6)
        c("  s_waitcnt lgkmcnt(0)\n  s_cmp_eq_u32 s38, 0\n  s_cbranch_scc0 L_done\n  s_mov_b32 s30, 0x10000000")
        for n in range(7): c("  v_writelane_b32 v8, s%d, %d\n  v_writelane_b32 v8, s%d, %d"%(64+4*n,2*n,66+4*n,2*n+1))
        c("  s_lshl_b32 s3, s2, 6\n  s_add_u32 s3, s3, %d\n  v_lshl_add_u32 v9, v2, 2, s3\n  v_cmp_gt_u32 vcc, 16, v2\n  s_and_saveexec_b64 s[60:61], vcc\n  buffer_store_dword v8, v9, s[28:31], 0 offen"%((16<<20)+16384))
    c("  s_endpgm")

    l=Em(a.o); l.vm=['ws','ws']
    l("L_loader:")
    def wdma(s):
        l("  s_add_u32 m0, s61, %d"%((s%3)*BUF)); sig(l,s,"s62",14)
        for i in range(4): l.v("  buffer_load_dwordx4 v20, %s, s62 offen offset:%d %s lds"%(SW,1024*i,laux),'W%d'%s)
    def poll(s,first=True):
        if first: sig(l,s,"s43",9+LR)
        l("  s_load_dwordx4 s[64:67], s[4:5], s43 glc")
    def check(s):
        l("  s_mov_b32 s63, 0\nL_sp%d:"%s)
        l("  s_waitcnt lgkmcnt(0)\n  s_xor_b64 s[10:11], s[64:65], s[8:9]\n  s_xor_b64 s[14:15], s[66:67], s[8:9]\n  s_or_b64 s[10:11], s[10:11], s[14:15]\n  s_cbranch_scc0 L_ok%d"%s)
        poll(s,False)
        l("  s_add_u32 s63, s63, 1\n  s_cmp_lt_u32 s63, 20000\n  s_cbranch_scc1 L_sp%d\n  s_waitcnt lgkmcnt(0)\nL_ok%d:"%(s,s))
    TD=g('td',5)
    X1=g('x1',2); D2=g('d2',0)
    if XP:
        touch0=touch
        def touch(e,j,d=68):
            if j>=8: touch0(e,j,d)
    if not CX and not XI: xdma(0,l)
    if X1==2: xdma(1,l)
    lst('x0i')
    flag(l,l.cnt('ws'),"0"); l.vm.append('fl')
    lst('fl')
    for j in range(3,TD): touch(l,j)
    if not CX and not XI: l.wait('x0')
    l("  s_barrier")
    lst('B0')
    poll(1)
    if X1==1: xdma(1,l)
    check(1); lst('chk1')
    poll(2)
    wdma(1)
    if not X1: xdma(1,l)
    for i in range(14):
        s=i+2
        if i==1 and D2:
            check(2); poll(3); wdma(2)
        xdma(s,l)
        if i or not D2:
            check(s)
            if s+1<16: poll(s+1)
            wdma(s)
        if i==1 and D2: touch(l,TD)
        if i or not D2: touch(l,i+TD)
        l("  s_waitcnt vmcnt(%d)"%min(l.cnt('W%d'%(s-1)),l.cnt('x%d'%(s-1))))
        l("  s_barrier")
        lst('B%d'%(s-1))
    l.wait('W15')
    l("  s_barrier")
    lst('B15')
    if ST: lout(names,g('lw',4))
    l("  s_endpgm")

    p=Em(a.o); p.vm=['lut']
    p("L_prod:")
    if ST: pnames.append("start"); p("  s_mov_b32 s80, s64")
    NP=8-SPARE
    if XP:
        p("  s_lshl_b32 s53, s2, 6\n  s_lshl_b32 s54, s38, 3\n  s_add_u32 s53, s53, s54\n  s_lshr_b32 s41, s53, 8\n  s_andn2_b32 s40, 4, s41")
        p("  v_lshrrev_b32 v20, 3, v2\n  v_add_u32 v20, s53, v20\n  v_lshlrev_b32 v20, 11, v20\n  v_and_b32 v1, 1, v2\n  v_lshl_add_u32 v20, v1, 6, v20\n  v_bfe_u32 v1, v2, 1, 2")
        p("  s_sub_u32 s53, s40, 1\n  v_add_u32 v21, s53, v1\n  v_mov_b32 v22, s41\n  v_cmp_eq_u32 vcc, 0, v1\n  v_cndmask_b32 v21, v21, v22, vcc\n  v_lshl_add_u32 v21, v21, 7, v20")
        p.v("  buffer_load_dword v23, v21, %s, 0 offen"%SX,'xp')
        p("  s_xor_b32 s53, s40, 4\n  v_add_u32 v21, s53, v1\n  s_add_u32 s53, s40, 3\n  v_mov_b32 v24, s53\n  v_cmp_eq_u32 vcc, v21, v22\n  v_cndmask_b32 v21, v21, v24, vcc\n  v_lshl_add_u32 v21, v21, 7, v20")
        if XP==1: p.wait('xp')
        p.v("  buffer_load_dword v23, v21, %s, 0 offen"%SX,'xp')
        if not SPARE: p("  s_cmp_ge_u32 s2, 28\n  s_cbranch_scc1 L_drain")
    p("  s_mov_b32 s56, %d\n  s_mov_b32 s57, %d\n  s_mov_b32 s58, %d\n  s_mov_b32 s59, 0\n  s_mov_b32 s55, %d\n  v_mov_b32 v15, 0x7ff00000"%(64*14336,WST,512*R,NP))
    if SPARE:
        p("  s_cmp_lt_u32 s2, 28\n  s_cbranch_scc1 L_pp")
        p("  s_mov_b32 s56, 512\n  s_mov_b32 s57, %d\n  s_mov_b32 s58, %d\n  s_mov_b32 s59, 4096\n  s_mov_b32 s51, 6"%(16*WST,64*128*R))
        p("L_pl:\n  s_add_u32 m0, m0, 4096\n  v_add_u32 v16, 256, v16\n  s_sub_u32 s51, s51, 1\n  buffer_load_dword v16, %s, 0 offen lds\n  buffer_load_dword v16, %s, s50 offen offset:256 lds"%(SL,SL))
        p("  s_cmp_lg_u32 s51, 0\n  s_cbranch_scc1 L_pl\n  s_branch L_pq")
        p("L_pp:\n  s_mov_b32 s22, %d\nL_pq:"%(15*64*14336))
        p.vm.append('lut')
    load_e(p)
    task_addr(p)
    ND=2; SHOT=False
    PW=g('pw',3)
    if PW==1:
        nonce(p)
        p("  s_lshl_b32 s53, s37, %d\n  s_add_u32 s53, s53, %d\n  s_mov_b32 s63, 0"%(13+LR,FOFF))
        p("  s_cmp_eq_u32 s38, 0\n  s_cbranch_scc0 L_pw1")
        p("  v_mov_b32 v12, s53\nL_pw0:\n  buffer_load_dwordx2 v[20:21], v12, %s, 0 offen sc1\n  s_add_u32 s63, s63, 1\n  s_waitcnt vmcnt(0)\n  v_cmp_ne_u64 vcc, v[20:21], v[10:11]\n  s_cbranch_vccz L_pw1"%SW)
        p("  s_cmp_lt_u32 s63, 20000\n  s_cbranch_scc1 L_pw0\nL_pw1:\n  s_barrier")
    if PW==2: p.wait('lut')
    if PW==3: p("  s_waitcnt vmcnt(0)")
    for b in range(ND):
        qload(p,32+16*b); p("  v_add_u32 v4, s56, v4")
        for k in range(2 if b<ND-1 else 0): p.v("  buffer_load_dword v17, v15, %s, 0 offen"%SQ,'dummy')
    if PW!=1: nonce(p)
    p("  s_mov_b32 s60, 0\n  s_mov_b32 s61, 0\n  s_mov_b32 s62, 0")
    p.wait('lut')
    p("  s_barrier")
    lst('lut',pnames,'lut')
    p("L_p:")
    for b in range(ND):
        lookup(p,32+16*b,6*(ND-1),120+8*b)
        p("  s_cmp_eq_u32 s62, 0\n  s_cbranch_scc1 L_pa%d"%b); flag(p,4,"s61"); p("  s_add_u32 s61, s61, s58"+("\n  s_add_u32 s61, s61, s58" if SHOT and b==0 else "")+"\nL_pa%d:"%b)
        wstore(p,120+8*b,"s60")
        qload(p,32+16*b)
        p("  v_add_u32 v4, s56, v4\n  v_add_u32 v5, s59, v5\n  s_add_u32 s62, s62, 1\n  s_add_u32 s60, s60, s57")
        if SHOT and b==1: p("  v_add_u32 v4, s56, v4\n  s_add_u32 s60, s60, s57")
        if ST:
            for it in (0,1,2,5,6,7):
                if it%ND==b:
                    n=len(pnames)
                    p("  s_cmp_eq_u32 s62, %d\n  s_cbranch_scc0 L_ps%d\n  s_memrealtime s[%d:%d]\nL_ps%d:"%(it+1,n,80+2*n,81+2*n,n)); pnames.append('s%d'%it)
        p("  s_cmp_lt_u32 s62, s55\n  s_cbranch_scc%d %s"%((1,"L_p") if b==ND-1 else (0,"L_pe")))
    p("L_pe:")
    flag(p,4,"s61")
    lst('end',pnames,'end')
    p("  s_cmp_eq_u32 s38, 0\n  s_cbranch_scc0 L_pz")
    arrive(p)
    p("  s_cmp_eq_u32 s2, 0\n  s_cbranch_scc0 L_pz\n  s_mov_b32 s63, 0\n  v_lshlrev_b32 v12, 6, v2\n  v_add_u32 v12, %d, v12"%AOFF)
    p("L_pw:")
    if not SPARE: p("  v_mov_b32 v13, 28\n  v_max_u32 v13, v13, v2")
    for k in range(4): p("  s_mov_b32 s53, %d\n  buffer_load_dwordx2 v[%d:%d], v12, %s, s53 offen sc1"%(4096*k,20+2*k,21+2*k,SW))
    p("  s_add_u32 s63, s63, 1\n  s_waitcnt vmcnt(0)\n  v_cmp_ne_u64 s[52:53], v[20:21], v[10:11]")
    if not SPARE: p("  s_and_b32 s52, s52, 0x0fffffff")
    for k in range(1,4): p("  v_cmp_ne_u64 vcc, v[%d:%d], v[10:11]\n  s_or_b64 s[52:53], s[52:53], vcc"%(20+2*k,21+2*k))
    p("  s_cbranch_scc0 L_pv\n  s_cmp_lt_u32 s63, %d\n  s_cbranch_scc1 L_pw"%(1 if g('ponly',0) else 20000))
    p("L_pv:\n  v_mov_b32 v12, %d\n  s_mov_b64 exec, 1\n  buffer_store_dwordx2 v[10:11], v12, %s, 0 offen sc1\n  s_mov_b64 exec, -1\nL_pz:"%(EOFF,SW))
    if ST:
        lout(pnames,0)
        open('names.txt','w').write(" ".join(names)+"\n"+" ".join(pnames))
    p("L_drain:\n  s_waitcnt vmcnt(0)\nL_done:\n  s_endpgm")
    return single(a.text(),256,512,LDSZ,160+96,102,160)
if __name__=="__main__":
    kw=dict(x.split('=') for x in sys.argv[1:])
    kw={k:(int(v) if v.lstrip('-').isdigit() else v) for k,v in kw.items()}
    print(gen(**kw))
```

```python
import sys,struct
from common import *
from gc2 import Em

XST=32768; WST=16384; BUF=XST+WST
GLUT=3*BUF; LDSZ=GLUT+4096
FOFF=0x700000; EOFF=0x900000; AOFF=0x901000; WSZ=0x905000
SX,SQ,SL,SW,SO="s[16:19]","s[20:23]","s[24:27]","s[28:31]","s[32:35]"
ACC=16; PS,QS=0,48
KU=8

def gen(**P):
    g=P.get
    a=Em(); ST=g('st',0); R=g('R',2); LR=R.bit_length()-1
    NS=g('ns',3); SPARE=g('spare',0)
    waux=g('waux','sc1'); laux=g('laux','sc1'); oaux=g('oaux','sc0 sc1')
    names=[]; pnames=[]
    def stamp(n,alt=None):
        if g('cs',0): n=alt
        if ST and n is not None: a("  s_memrealtime s[%d:%d]\n  s_memtime s[%d:%d]"%(64+4*n,65+4*n,66+4*n,67+4*n))
    def lst(nm,names=names,sel='lut,fl,B0,chk1,B1,B2,B3,B8,B13,B15'):
        if ST and nm in g('sn',sel).split(','):
            n=len(names); assert n<11
            a("  s_memrealtime s[%d:%d]"%(80+2*n,81+2*n)); names.append(nm)
    def lout(names,wave):
        a("  s_waitcnt lgkmcnt(0)")
        for n in range(len(names)): a("  v_writelane_b32 v140, s%d, %d"%(80+2*n,n))
        a("  s_cmp_eq_u32 s38, %d\n  s_cbranch_scc0 L_done\n  s_mov_b32 s30, 0x10000000\n  s_lshl_b32 s3, s2, 8\n  s_add_u32 s3, s3, %d\n  v_lshl_add_u32 v9, v2, 2, s3\n  buffer_store_dword v140, v9, s[28:31], 0 offen"%(wave,(16<<20)+32768))
    def load_e(e): e("  s_add_u32 s10, s28, %d\n  s_addc_u32 s11, s29, 0\n  s_load_dwordx2 s[6:7], s[10:11], 0"%EOFF)
    def nonce(e,v=True):
        e("  s_waitcnt lgkmcnt(0)\n  s_mul_i32 s8, s6, 1664525\n  s_mul_i32 s9, s7, 22695477\n  s_add_u32 s8, s8, 1013904223\n  s_add_u32 s9, s9, 1")
        if v: e("  v_mov_b32 v10, s8\n  v_mov_b32 v11, s9")
    def arrive(e):
        e("  s_lshl_b32 s3, s2, 6\n  s_add_u32 s3, s3, %d\n  v_mov_b32 v12, s3\n  s_mov_b64 exec, 1"%AOFF)
        e("  buffer_store_dwordx2 v[10:11], v12, %s, 0 offen sc1\n  s_mov_b64 exec, -1"%SW)
    def taddr(e,scr_s):
        e("  v_and_b32 v1, 1, v3\n  v_lshlrev_b32 v1, 10, v1\n  v_lshl_add_u32 v1, v9, 3, v1\n  v_lshrrev_b32 v6, 1, v3\n  v_lshl_add_u32 v6, v6, 4, v1\n  v_add_u32 v6, %s, v6"%scr_s)
        e("  v_lshl_add_u32 v7, v2, 4, %s"%scr_s)
    def qload(e,Q):
        for i in range(4): e.v("  buffer_load_dwordx4 v[%d:%d], v4, %s, %s offen %s"%(Q+4*i,Q+3+4*i,SQ,"s%d"%(44+i) if i else "0",g('qaux','')),'q')
    def lookup(e,Q,young,O,dma=None):
        for i in range(4):
            e("  s_waitcnt vmcnt(%d)"%(3-i+young+(i if dma else 0)))
            for j in range(4): e("  v_lshl_add_u32 v%d, v%d, 8, v5"%(Q+4*i+j,Q+4*i+j))
            for j in range(4): e("  ds_read_u16 v%d, v%d offset:%d"%(96+4*i+j,Q+4*i+j,(j>>1)*128+(j&1)*2))
            if dma: e.v(dma[i],'x0')
        e("  s_waitcnt lgkmcnt(8)")
        for j in range(4): e("  v_lshl_or_b32 v%d, v%d, 16, v%d"%(112+2*j,100+j,96+j))
        for j in range(4):
            e("  s_waitcnt lgkmcnt(3)")
            e("  v_lshl_or_b32 v%d, v%d, 16, v%d"%(113+2*j,108+j,104+j))
            e("  ds_write_b64 v6, v[%d:%d] offset:%d"%(112+2*j,113+2*j,256*j))
        e("  s_waitcnt lgkmcnt(0)")
        for j in range(2): e("  ds_read_b128 v[%d:%d], v7 offset:%d"%(O+4*j,O+3+4*j,1024*j))
    def wstore(e,O,so):
        for j in range(2):
            e("  s_waitcnt lgkmcnt(%d)"%(1-j))
            e("  buffer_store_dwordx4 v[%d:%d], v8, %s, %s offen offset:%d %s"%(O+4*j,O+3+4*j,SW,so,1024*j,waux))
    def flag(e,n,so):
        e("  s_waitcnt vmcnt(%d)\n  s_mov_b64 exec, %d"%(n,(1<<R)-1))
        e("  buffer_store_dwordx2 v[10:11], v14, %s, %s offen %s\n  s_mov_b64 exec, -1"%(SW,so,waux))

    def task_addr(e):
        e("  s_lshl_b32 s53, s38, 11\n  s_add_u32 s53, s53, %d"%XST)
        taddr(e,"s53")
        e("  s_lshl_b32 s53, s37, 18\n  s_lshl_b32 s54, s52, 11\n  s_add_u32 s53, s53, s54\n  v_lshl_add_u32 v8, v2, 4, s53")
        e("  s_lshl_b32 s53, s37, 6\n  s_lshr_b32 s54, s52, 1\n  s_add_u32 s53, s53, s54\n  s_lshl_b32 s53, s53, %d\n  s_and_b32 s54, s52, 1\n  s_lshl_b32 s54, s54, 3\n  s_add_u32 s53, s53, s54\n  s_add_u32 s53, s53, %d\n  v_lshl_add_u32 v14, v2, 7, s53"%(7+LR,FOFF))
    def sig(e,j,dst,sh,add=0):
        if j>=8: e("  s_mov_b32 %s, %d"%(dst,(j<<sh)+add)); return
        if g('rot',1)==0: e("  s_add_u32 %s, s36, %d\n  s_and_b32 %s, %s, 7\n  s_lshl_b32 %s, %s, %d"%(dst,j,dst,dst,dst,dst,sh))
        elif j==0: e("  s_lshl_b32 %s, s36, %d"%(dst,sh))
        elif j<5: e("  s_add_u32 %s, s40, %d\n  s_lshl_b32 %s, %s, %d"%(dst,j-1,dst,dst,sh))
        else: e("  s_xor_b32 %s, s40, %d\n  s_cmp_ge_u32 %s, s36\n  s_addc_u32 %s, %s, 0\n  s_lshl_b32 %s, %s, %d"%(dst,4+j-5,dst,dst,dst,dst,dst,sh))
        if add: e("  s_add_u32 %s, %s, %d"%(dst,dst,add))
    def touch_addr(e):
        e("  s_lshl_b32 s53, s37, 2\n  s_add_u32 s53, s53, s39\n  s_mul_i32 s53, s53, 3\n  s_min_u32 s53, s53, 253\n  s_lshl_b32 s54, s36, 8\n  s_add_u32 s53, s53, s54\n  s_lshl_b32 s53, s53, 11")
        e("  s_add_u32 s12, s16, s53\n  s_addc_u32 s13, s17, 0")
    def touch(e,j,d=68):
        if g('touch',1) and j<16:
            sig(e,j,"s58",7)
            for r in range(3):
                for h in range(2): e("  s_load_dword s%d, s[12:13], s58 offset:%d"%(d+2*r+h,r*2048+64*h))

    def xdma(s,l,hs=(0,1)):
        if 0 in hs: sig(l,s,"s41",7)
        for h in hs:
            l("  s_add_u32 m0, s60, %d"%((s%3)*BUF+4096*h)+("\n  s_add_u32 s41, s41, 65536" if h else "\n  s_nop 0"))
            for i in range(4): l.v("  buffer_load_dwordx4 v%d, %s, s41 offen offset:%d lds"%(16+i,SX,1024*i),'x%d'%s)
    CX=g('cx',0) and not g('xi',1)
    a("  s_cmp_ge_u32 s2, 256\n  s_cbranch_scc1 L_done")
    stamp(0,0)
    a("  s_load_dwordx2 s[24:25], s[0:1], 16\n  s_load_dwordx2 s[20:21], s[0:1], 8\n  s_load_dwordx2 s[28:29], s[0:1], 40\n  s_load_dwordx2 s[16:17], s[0:1], 0\n  s_load_dwordx2 s[32:33], s[0:1], 24")
    if not SPARE and not g('xp',0): a("  s_sub_u32 s3, s2, 28\n  s_cmp_lt_u32 s3, 4\n  s_cbranch_scc1 L_done")
    for d,sz in ((16,4194304),(20,14680064),(24,114688),(28,WSZ),(32,14680064)): a("  s_mov_b32 s%d, %d\n  s_mov_b32 s%d, 0x20000"%(d+2,sz,d+3))
    a("  v_lshrrev_b32 v1, 6, v0\n  v_and_b32 v2, 63, v0\n  v_readfirstlane_b32 s38, v1\n  v_and_b32 v3, 31, v0\n  v_bfe_u32 v9, v0, 5, 1")
    for i in range(1,4): a("  s_mov_b32 s%d, %d"%(44+i,i*14336))
    a("  v_mul_u32_u24 v1, %d, v9\n  v_lshl_add_u32 v4, v3, 4, v1"%(4*14336))
    a("  v_lshlrev_b32 v1, 3, v3\n  v_lshl_add_u32 v16, v9, 2, v1\n  v_lshlrev_b32 v5, 2, v3")
    if g('mm',0):
        a("  s_lshr_b32 s53, s2, 3\n  s_sub_u32 s53, s53, 4\n  s_mul_i32 s36, s53, 37\n  s_lshr_b32 s36, s36, 8\n  s_mul_i32 s54, s36, 7\n  s_sub_u32 s37, s53, s54")
        a("  s_and_b32 s3, s2, 1\n  s_lshl_b32 s3, s3, 2\n  s_add_u32 s36, s36, s3\n  s_bfe_u32 s3, s2, 0x20001\n  s_mul_i32 s3, s3, 7\n  s_add_u32 s37, s37, s3")
    else:
        a("  s_and_b32 s3, s2, 1\n  s_lshl_b32 s3, s3, 2\n  s_bfe_u32 s36, s2, 0x20003\n  s_add_u32 s36, s36, s3")
        a("  s_bfe_u32 s3, s2, 0x20001\n  s_mul_i32 s3, s3, 7\n  s_lshr_b32 s37, s2, 5\n  s_add_u32 s37, s37, s3\n  s_sub_u32 s37, s37, 1")
    a("  s_cmp_lt_u32 s2, 32\n  s_cselect_b32 s36, 8, s36\n  s_cselect_b32 s37, s2, s37\n  s_cselect_b32 s51, 0, %d"%GLUT)
    if not SPARE and g('xp',0): a("  s_min_u32 s37, s37, 27")
    if SPARE: a("  s_sub_u32 s3, s2, 28\n  s_mul_i32 s53, s3, 7\n  s_cmp_lt_u32 s3, 4\n  s_cselect_b32 s36, 15, s36\n  s_cselect_b32 s37, s53, s37")
    a("  s_lshl_b32 s52, s36, 3\n  s_add_u32 s52, s52, s38\n  s_mul_i32 s53, s52, %d\n  s_lshl_b32 s54, s37, 9\n  s_add_u32 s53, s53, s54\n  v_add_u32 v4, s53, v4"%(8*14336))
    a("  s_mul_i32 s53, s38, 14336\n  s_lshl_b32 s54, s37, 8\n  s_add_u32 s53, s53, s54\n  v_add_u32 v16, s53, v16\n  s_lshl_b32 s53, s38, 9\n  s_add_u32 m0, s53, s51\n  s_mov_b32 s50, %d\n  v_add_u32 v5, s51, v5"%(7168-256))
    a("  s_and_b32 s39, s38, 3\n  s_cmp_lt_u32 s2, 32\n  s_waitcnt lgkmcnt(0)")
    LL=g('ll',0)
    def lutdma(e,v="v16"):
        e.v("  buffer_load_dword %s, %s, 0 offen lds"%(v,SL),'lut'); e.v("  buffer_load_dword %s, %s, s50 offen offset:256 lds"%(v,SL),'lut')
    if not LL: lutdma(a)
    a("  s_cbranch_scc1 L_prod")
    PK=g('pk',0)
    if PK:
        load_e(a)
        a("  s_and_b32 s3, s36, 3\n  s_cmp_ge_u32 s3, %d\n  s_cbranch_scc0 L_q\n  s_waitcnt lgkmcnt(0)\nL_q:"%PK)
    qload(a,32)
    if not PK: load_e(a)
    if LL:
        a("  s_mul_i32 s53, s38, 14336\n  s_lshl_b32 s54, s37, 8\n  s_add_u32 s53, s53, s54\n  v_mov_b32 v21, v16")
        if LL==1:
            a("  s_and_b32 s54, s36, 3\n  s_lshl_b32 s54, s54, 6\n  s_add_u32 s53, s53, s54\n  s_load_dword s68, s[24:25], s53\n  s_load_dword s69, s[24:25], s53 offset:7168")
        else:
            for k in range(8): a("  s_load_dword s%d, s[24:25], s53 offset:%d"%(68+k,(k>>2)*7168+(k&3)*64))
    task_addr(a); touch_addr(a)
    a("  s_andn2_b32 s40, 4, s36")
    if g('t0',0) and not g('xp',0):
        a("  s_cmp_ge_u32 s38, 4\n  s_cbranch_scc0 L_la"); touch(a,0); a("L_la:")
    a("  v_and_b32 v3, 15, v2\n  v_lshrrev_b32 v9, 4, v2")
    a("  v_lshrrev_b32 v1, 1, v3\n  v_xor_b32 v1, v1, v9\n  v_lshlrev_b32 v1, 4, v1\n  v_lshl_add_u32 v144, v3, 7, v1\n  s_lshl_b32 s54, s38, 13\n  v_add_u32 v144, s54, v144\n  v_xor_b32 v145, 64, v144")
    a("  v_lshlrev_b32 v1, 11, v9\n  v_lshl_add_u32 v146, v3, 4, v1\n  v_add_u32 v146, %d, v146"%XST)
    a("  s_lshl_b32 s52, s36, 8\n  s_lshl_b32 s53, s38, 6\n  s_add_u32 s52, s52, s53\n  s_mul_i32 s52, s52, 7168\n  s_lshl_b32 s53, s37, 8\n  s_add_u32 s52, s52, s53")
    a("  v_mul_u32_u24 v1, 28672, v9\n  v_lshl_add_u32 v1, v3, 4, v1\n  v_add_u32 v147, s52, v1")
    a("  v_lshrrev_b32 v20, 3, v2\n  v_lshlrev_b32 v20, 11, v20\n  v_lshrrev_b32 v1, 4, v2\n  v_xor_b32 v1, v1, v2\n  v_and_b32 v1, 7, v1\n  v_lshl_add_u32 v20, v1, 4, v20")
    a("  s_lshl_b32 s52, s36, 19\n  s_lshl_b32 s53, s39, 17\n  s_add_u32 s53, s52, s53\n  v_add_u32 v16, s53, v20\n  v_xor_b32 v17, 64, v16")
    a("  v_add_u32 v18, %d, v16\n  v_add_u32 v19, %d, v17\n  v_add_u32 v17, %d, v17\n  s_lshl_b32 s60, s39, 13"%(2*15360,3*15360,15360))
    a("  s_lshl_b32 s53, s37, 18\n  s_lshl_b32 s54, s39, 12\n  s_add_u32 s53, s53, s54\n  v_lshl_add_u32 v20, v2, 4, s53\n  s_add_u32 s61, s54, %d"%XST)
    a("  s_lshl_b32 s53, s37, %d\n  s_lshl_b32 s54, s39, %d\n  s_add_u32 s53, s53, s54\n  s_and_b32 s54, s36, %d\n  s_lshl_b32 s54, s54, 7\n  s_add_u32 s53, s53, s54\n  s_add_u32 s53, s53, %d"%(13+LR,7+LR,R-1,FOFF))
    a("  s_add_u32 s4, s28, s53\n  s_addc_u32 s5, s29, 0")
    if ST: names.append("start"); a("  s_mov_b32 s80, s64")
    XI=g('xi',1); XP=g('xp',0)
    if LL: nonce(a); lutdma(a,"v21")
    if XI:
        sig(a,0,"s41",7)
        a("  s_lshr_b32 s53, s38, 2\n  s_lshl_b32 s54, s53, 16\n  s_add_u32 s41, s41, s54\n  s_lshl_b32 s53, s53, 12\n  s_add_u32 m0, s60, s53")
    if not LL: nonce(a)
    a.wait('lut')
    a("  s_barrier")
    lst('lut')
    if g('cs',0): stamp(0,1); a("  s_waitcnt vmcnt(0)"); stamp(0,2)
    lookup(a,32,0,148,["  buffer_load_dwordx4 v%d, %s, s41 offen offset:%d lds"%(16+i,SX,1024*i) for i in range(4)] if XI else None)
    wstore(a,148,"0"); a.vm+=['ws','ws']
    a("  s_cmp_ge_u32 s38, 4\n  s_cbranch_scc1 L_loader")

    c=a
    if g('cs',0): stamp(0,3)
    if CX: xdma(0,c)
    if not XP: touch(c,1,92); touch(c,2,92)
    c("  v_mov_b32 v5, v144\n  v_mov_b32 v6, v145\n  v_mov_b32 v7, v146")
    for r in range(128): c("  v_mov_b32 v%d, 0"%(ACC+r))
    flag(c,c.cnt('ws'),"0")
    if g('c3',0): touch(c,3,92)
    for k in range(16): c("  s_mov_b32 s%d, %d"%(44+k,((k>>2)*16+(k&3))*7168))
    c("  s_mov_b32 s60, 0\n  s_mov_b32 s61, 0")
    if g('prio',0): c("  s_setprio 1")
    def frag(setb,kind,n):
        b=setb+(4*n if kind=='x' else 16+4*n)
        return "a[%d:%d]"%(b,b+3)
    def reads(setb,ks,ms=(0,1,2,3),vx=5,vw=7):
        xs=["  ds_read_b128 %s, v%d offset:%d"%(frag(setb,'x',i),vx+ks,2048*i) for i in ms]
        ws=["  ds_read_b128 %s, v%d offset:%d"%(frag(setb,'w',t),vw,ks*4*2048+256*t) for t in range(8)]
        return [ws[0]]+xs+ws[1:]
    def block(setb,fill,ms=(0,1,2,3),imajor=False):
        order=[(t,i) for i in ms for t in range(8)] if imajor else [(t,i) for t in range(8) for i in ms]
        for n,(t,i) in enumerate(order):
            acc=ACC+(i*8+t)*4
            c("  v_mfma_f32_16x16x32_bf16 v[%d:%d], %s, %s, v[%d:%d]"%(acc,acc+3,frag(setb,'x',i),frag(setb,'w',t),acc,acc+3))
            for x in fill.get(n,[]): c(x)
    def spread(items,first,step,fill=None):
        fill={} if fill is None else fill
        for k,x in enumerate(items): fill.setdefault(first+k*step,[]).append(x)
        return fill
    def even(items,n,fill,first=0):
        for k,x in enumerate(items): fill.setdefault(first+k*n//len(items),[]).append(x)
        return fill
    tsel=[0]
    def cvst(i,r):
        tb=148+4*(tsel[0]%3); tsel[0]+=1
        L=["  v_cvt_pk_bf16_f32 v%d, v%d, v%d"%(tb+p,ACC+(i*8+2*p)*4+r,ACC+(i*8+2*p+1)*4+r) for p in range(4)]
        L.append("  buffer_store_dwordx4 v[%d:%d], v147, %s, s%d offen %s"%(tb,tb+3,SO,44+i*4+r,oaux))
        return L
    L15=g('l15',1) and g('ch',1)
    def chain():
        passes=[tuple(int(y) for y in x) for x in str(g('ps','01,23')).split(',')]
        S0=13
        units=[(s,(0,1,2,3)) for s in range(S0)]+[(s,H) for H in passes for s in range(S0,16)]
        TC=g('tc',0)
        pairs=[]
        for u,(s,H) in enumerate(units):
            if u<S0 or TC: pairs+=[(u,t,i,(0,1)) for t in range(8) for i in H]
            elif u==len(units)-1 and g('im',1): pairs+=[(u,t,i,(0,)) for t in range(8) for i in H]+[(u,t,i,(1,)) for i in H for t in range(8)]
            else: pairs+=[(u,t,i,(ks,)) for ks in (0,1) for t in range(8) for i in H]
        ustart={}
        for n,(u,t,i,K) in enumerate(pairs): ustart.setdefault(u,n)
        first={}; last={}
        for n,(u,t,i,K) in enumerate(pairs):
            for ks in K:
                for k in (('x',u,i,ks),('w',u,t,ks)): first.setdefault(k,n); last[k]=n
        LT=g('lt',8 if TC else 16)
        def want(k):
            kind,u,j,ks=k
            if u<S0: return first[k]-12 if kind=='w' else ustart[u]-11+(0,0,1,1,2,4,5,6)[2*j+ks]
            w=first[k]-LT
            if g('tb',1) and not TC:
                H=units[u][1]; nb=8*len(H); b0=ustart[u]+ks*nb
                rank=(1+H.index(j)) if kind=='x' else (0 if j==0 else len(H)+j)
                w=b0-16+rank
            if w<ustart[S0] and not TC: w=ustart[S0]-(ustart[S0]-w+1)//2
            return max(w,ustart[S0]-12)
        keys=sorted(first,key=lambda k:(want(k),first[k],k[0]=='x',k[3]))
        areg={0:(144,146),1:(8,10),2:(11,13)}
        slot={}; owner=[None]*24
        def place(k,n):
            kind,u,j,ks=k
            if u<S0: sl=(u&1)*8+2*j+ks if kind=='x' else 16+(j&3)*2+ks
            else:
                fr=[q for q in range(24) if owner[q] is None or last[owner[q]]<=n]
                if not fr: return None
                sl=min(fr,key=lambda q:-1 if owner[q] is None else last[owner[q]])
            assert owner[sl] is None or last[owner[sl]]<=n,(k,n)
            owner[sl]=k; slot[k]=sl
            s=units[u][0]; vx,vw=((5,7),(3,1))[u&1] if u<S0 else areg[s%3]
            if kind=='x': return "  ds_read_b128 a[%d:%d], v%d offset:%d"%(4*sl,4*sl+3,vx+ks,2048*j)
            return "  ds_read_b128 a[%d:%d], v%d offset:%d"%(4*sl,4*sl+3,vw,ks*8192+256*j)
        out=[]; issued={}
        def size(x): return 4 if (x.split()[0] in ('s_waitcnt','s_barrier','s_nop','s_cselect_b32','s_cbranch_scc0','s_sub_u32') or x.endswith('s62') or (x.split()[0]=='v_add_u32' and ', s60,' in x)) else 8
        text={u:[] for u in range(-1,len(units))}
        RPG=g('rpg',2); kq=list(keys); opened=0
        fl={}
        def at(n,x): fl.setdefault(n,[]).append(x)
        bar={}
        for u in range(S0):
            b=ustart[u]; bar[b+19]=u+1
            if u<S0-1:
                vx,vw=((3,1),(5,7))[u&1]
                at(b+1,"  s_cmp_eq_u32 s60, %d"%(3*BUF)); at(b+2,"  s_cselect_b32 s60, 0, s60"); at(b+2,"  v_add_u32 v%d, s60, v146"%vw)
                at(b+11,"  v_add_u32 v%d, s60, v144"%vx); at(b+13,"  v_add_u32_e64 v%d, s60, v145"%(vx+1)); at(b+31,"  s_add_u32 s60, s60, s62")
                if u&1: at(b+31,"  s_sub_u32 s61, s61, 1")
            else:
                for q,b3 in enumerate((1,2)):
                    vx,vw=areg[b3]
                    at(b+2+6*q,"  v_add_u32 v%d, %d, v144"%(vx,b3*BUF)); at(b+3+6*q,"  v_add_u32 v%d, %d, v145"%(vx+1,b3*BUF)); at(b+6+6*q,"  v_add_u32 v%d, %d, v146"%(vw,b3*BUF))
        for p in range(len(passes)-1):
            b=ustart[S0+3*(p+1)]; e=ustart.get(S0+3*(p+2),len(pairs))
            L=sum([cvst(i,r) for i in passes[p] for r in range(4)],[])
            span=max(1,int((e-b-1)*g('sf',65)/100))
            for q,x in enumerate(L): at(b+(0 if TC else 2)+q*span//len(L),x)
        for n in range(-12,len(pairs)):
            T=text[pairs[n][0] if n>=0 else -1]
            if n>=0:
                u,t,i,K=pairs[n]; acc=ACC+(i*8+t)*4
                for ks in K:
                    X,W=slot[('x',u,i,ks)],slot[('w',u,t,ks)]
                    assert ('x',u,i,ks) not in out and ('w',u,t,ks) not in out
                    T.append("  v_mfma_f32_16x16x32_bf16 v[%d:%d], a[%d:%d], a[%d:%d], v[%d:%d]"%(acc,acc+3,4*X,4*X+3,4*W,4*W+3,acc,acc+3))
            G=[]
            if n in bar:
                G+=["  s_waitcnt lgkmcnt(0)","  s_barrier"]; out.clear(); opened=bar[n]
            G+=fl.get(n,[])
            k=0
            while kq and k<(RPG if n<ustart[S0] else g('rpt',3 if TC else 1)) and want(kq[0])<=n:
                s=units[kq[0][1]][0]
                if L15 and s==15 and kq[0][0]=='x' and kq[0][2]>=2: s=16
                if s>opened and s<=S0: break
                r=place(kq[0],n)
                if r is None: break
                if s>opened: G.append("  s_barrier"); opened=s
                G.append(r); out.append(kq[0]); issued[kq[0]]=n; kq.pop(0); k+=1
            if n+1<len(pairs) and n>=-1:
                need=lambda m:[(a_,pairs[m][0],b_,ks) for ks in pairs[m][3] for a_,b_ in (('x',pairs[m][2]),('w',pairs[m][1]))]
                for k in need(n+1): assert k in issued,(k,n)
                if any(k in out for k in need(n+1)):
                    idx=max(out.index(k) for k in need(n+1) if k in out)
                    while idx+1<len(out) and issued[out[idx+1]]<=n-(g('age',3) if n<ustart[S0]+(10**6 if TC else 0) else g('aget',6)): idx+=1
                    G.append("  s_waitcnt lgkmcnt(%d)"%min(15,len(out)-1-idx)); del out[:max(idx+1,len(out)-15)]
            if n>=0 and n+1 in ustart.values() and pairs[n][0]<S0-1 and pairs[n][0]&1: G.append("  s_cbranch_scc0 L_c")
            if n>=0 and sum(size(x) for x in G)%8: G.insert(len(G)-1 if G[-1].startswith("  s_cbranch") else len(G),"  s_nop 0")
            T+=G
        for u in range(2,S0-1): assert text[u]==text[u&1],u
        c("  s_mov_b32 s60, %d\n  s_mov_b32 s61, 5\n  s_mov_b32 s62, %d"%(BUF,BUF))
        stamp(1,4)
        c("  s_barrier")
        stamp(2,5)
        for x in text[-1][:-1]: c(x)
        c("  s_cmp_eq_u32 s38, 0\n  s_cbranch_scc0 L_c0")
        arrive(c)
        c("L_c0:\n"+text[-1][-1])
        c(".p2align 6\nL_c:")
        for x in text[0]+text[1]: c(x)
        stamp(3)
        for u in range(S0-1,len(units)):
            for x in text[u]: c(x)
        stamp(4)
        if TC or not g('im',1) or len(passes[-1])<2: c("  s_nop 7")
        for i in passes[-1]:
            for r in range(4):
                for x in cvst(i,r): c(x)
    def plain():
        stamp(1,4)
        c("  s_barrier")
        if CX: c("  s_waitcnt vmcnt(1)")
        stamp(2,5)
        for r in reads(PS,0): c(r)
        c("  s_cmp_eq_u32 s38, 0\n  s_cbranch_scc0 L_c0")
        arrive(c)
        c("L_c0:\n  s_waitcnt lgkmcnt(0)")
        NLOOP=15 if NS==0 else 15-NS
        f1={1:["  s_add_u32 s60, s60, %d"%BUF],3:["  s_cmp_eq_u32 s60, %d"%(3*BUF)],5:["  s_cselect_b32 s60, 0, s60\n  s_add_u32 s61, s61, 1"]}
        f2={0:["  v_add_u32 v7, s60, v146\n  v_add_u32 v5, s60, v144"],2:["  v_add_u32 v6, s60, v145\n  s_cmp_lt_u32 s61, %d"%NLOOP]}
        c(".p2align 6\nL_c:")
        block(PS,spread(reads(QS,1),1,2,dict(f1)))
        c("  s_waitcnt lgkmcnt(0)\n  s_barrier")
        block(QS,spread(reads(PS,0),1,2,dict(f2)))
        c("  s_waitcnt lgkmcnt(0)\n  s_cbranch_scc1 L_c")
        stamp(3)
        if NS==0:
            block(PS,spread(reads(QS,1),1,2))
            c("  s_waitcnt lgkmcnt(0)\n  s_nop 0")
            block(QS,{},imajor=True)
            stamp(4)
            for i in range(4):
                for r in range(4):
                    for x in cvst(i,r): c(x)
        else:
            H1,H2=(0,1),(2,3)
            S0=16-NS
            areg={0:(144,146),1:(8,10),2:(11,13)}
            setup=[]
            for b in (1,2):
                vx,vw=areg[b]
                setup+=["  v_add_u32 v%d, %d, v144"%(vx,b*BUF),"  v_add_u32 v%d, %d, v145"%(vx+1,b*BUF),"  v_add_u32 v%d, %d, v146"%(vw,b*BUF)]
            def rd(setb,s,ks,ms): return reads(setb,ks,ms,*areg[s%3])
            block(PS,spread(setup,2,2,spread(reads(QS,1),1,2)))
            c("  s_waitcnt lgkmcnt(0)\n  s_barrier")
            block(QS,spread(rd(PS,S0,0,H1),1,2))
            c("  s_waitcnt lgkmcnt(0)\n  s_nop 0")
            seq=[(s,ks,H) for H in (H1,H2) for s in range(S0,16) for ks in (0,1)]
            st1=sum([cvst(i,r) for i in H1 for r in range(4)],[])
            npart=min(2*NS-1,g('np',4)); per=(8+npart-1)//npart*5
            tl=cvst(2,0)+cvst(2,1)+cvst(2,2)+cvst(2,3)+cvst(3,0)+cvst(3,1)+cvst(3,2)+cvst(3,3)
            for n,(s,ks,H) in enumerate(seq):
                setb=PS if n%2==0 else QS; oth=QS if n%2==0 else PS
                f={}
                if n+1<len(seq):
                    s2,k2,Hn=seq[n+1]
                    spread(rd(oth,s2,k2,Hn),0,1,f)
                if H==H2:
                    k=n-2*NS
                    part=st1[k*per:(k+1)*per]
                    if part: even(part,15,f,1 if k else 2) if k else even(part,13,f,2)
                last=(n==len(seq)-1)
                if last: f.setdefault(15,[]).extend(tl[:0])
                block(setb,f,H,imajor=(last or n==2*NS-1))
                if last: break
                nb = (H==H1 and ks==0 and s<15)
                c("  s_waitcnt lgkmcnt(0)\n  "+("s_barrier" if nb else "s_nop 0"))
            stamp(4)
            for x in tl: c(x)
    if g('ch',1): chain()
    else: plain()
    if ST:
        stamp(5)
        c("  s_waitcnt vmcnt(0)")
        stamp(6,6)
        c("  s_waitcnt lgkmcnt(0)\n  s_cmp_eq_u32 s38, 0\n  s_cbranch_scc0 L_done\n  s_mov_b32 s30, 0x10000000")
        for n in range(7): c("  v_writelane_b32 v8, s%d, %d\n  v_writelane_b32 v8, s%d, %d"%(64+4*n,2*n,66+4*n,2*n+1))
        c("  s_lshl_b32 s3, s2, 6\n  s_add_u32 s3, s3, %d\n  v_lshl_add_u32 v9, v2, 2, s3\n  v_cmp_gt_u32 vcc, 16, v2\n  s_and_saveexec_b64 s[60:61], vcc\n  buffer_store_dword v8, v9, s[28:31], 0 offen"%((16<<20)+16384))
    c("  s_endpgm")

    l=Em(a.o); l.vm=['ws','ws']
    l("L_loader:")
    def wdma(s):
        l("  s_add_u32 m0, s61, %d"%((s%3)*BUF)); sig(l,s,"s62",14)
        for i in range(4): l.v("  buffer_load_dwordx4 v20, %s, s62 offen offset:%d %s lds"%(SW,1024*i,laux),'W%d'%s)
    def poll(s,first=True):
        if first: sig(l,s,"s43",9+LR)
        l("  s_load_dwordx4 s[64:67], s[4:5], s43 glc")
    def check(s):
        l("  s_mov_b32 s63, 0\nL_sp%d:"%s)
        l("  s_waitcnt lgkmcnt(0)\n  s_xor_b64 s[10:11], s[64:65], s[8:9]\n  s_xor_b64 s[14:15], s[66:67], s[8:9]\n  s_or_b64 s[10:11], s[10:11], s[14:15]\n  s_cbranch_scc0 L_ok%d"%s)
        poll(s,False)
        l("  s_add_u32 s63, s63, 1\n  s_cmp_lt_u32 s63, 20000\n  s_cbranch_scc1 L_sp%d\n  s_waitcnt lgkmcnt(0)\nL_ok%d:"%(s,s))
    TD=g('td',5)
    X1=g('x1',1); D2=g('d2',0)
    if XP:
        touch0=touch
        def touch(e,j,d=68):
            if j>=8: touch0(e,j,d)
    XO=g('xo',0)
    if not CX and not XI and XO!=1: xdma(0,l,(0,1) if XO==0 else (0,))
    if X1==2: xdma(1,l)
    lst('x0i')
    flag(l,l.cnt('ws'),"0"); l.vm.append('fl')
    lst('fl')
    if XO: xdma(0,l,(0,1) if XO==1 else (1,))
    TP=g('tp',0)
    if TP:
        for j in range(3,TD): touch(l,j)
    if not CX and not XI: l.wait('x0')
    l("  s_barrier")
    lst('B0')
    poll(1)
    units=[]
    for s in range(1,16): units+=[('x',s,0),('x',s,1),('w',s,0)]
    if X1==0: units[0:3]=[units[2],units[0],units[1]]
    if X1==2: units=units[2:]
    if L15: units[-3:]=[units[-1],units[-3]]
    LD=[int(x) for x in str(g('ld','6')).split(',')]
    done=0; nt=4
    for i in range(14):
        k=min(len(units),(LD[i] if i<len(LD) else 3*(i+2))-(2 if X1==2 else 0))
        for kind,s,h in units[done:k]:
            if kind=='x': xdma(s,l,(h,))
            else:
                check(s)
                if s==1: lst('chk1')
                if s<15: poll(s+1)
                wdma(s)
        done=k
        if TP: nt=max(nt,TD)
        for j in range(nt,min(i+TD,nt+1)+1): touch(l,j); nt=j+1
        l("  s_waitcnt vmcnt(%d)"%min(l.cnt('W%d'%(i+1)),l.cnt('x%d'%(i+1))))
        l("  s_barrier")
        lst('B%d'%(i+1))
    assert done==len(units)
    if L15:
        xdma(15,l,(1,))
        l("  s_waitcnt vmcnt(4)\n  s_barrier")
        lst('B15')
        l("  s_waitcnt vmcnt(0)\n  s_barrier")
    else:
        l.wait('W15')
        l("  s_barrier")
        lst('B15')
    if ST: lout(names,g('lw',4))
    l("  s_endpgm")

    p=Em(a.o); p.vm=['lut']
    p("L_prod:")
    if LL: lutdma(p)
    if ST: pnames.append("start"); p("  s_mov_b32 s80, s64")
    NP=8-SPARE
    XL=g('xl',0)
    if XL:
        p("  s_and_b32 s53, s2, 1\n  s_lshl_b32 s53, s53, 2\n  s_lshr_b32 s54, s2, 3\n  s_add_u32 s41, s53, s54\n  s_andn2_b32 s40, 4, s41")
        p("  s_lshl_b32 s53, s41, 19\n  s_lshl_b32 s54, s38, 16\n  s_add_u32 s53, s53, s54\n  v_lshrrev_b32 v20, 3, v2\n  v_lshlrev_b32 v20, 11, v20\n  v_and_b32 v1, 7, v2\n  v_lshl_add_u32 v20, v1, 4, v20\n  v_add_u32 v20, s53, v20")
        for r in range(XL):
            p("  s_lshl_b32 s53, s%d, 7"%(41-r))
            for k in range(4):
                p.v("  buffer_load_dwordx4 v[%d:%d], v20, %s, s53 offen"%(64+4*k,67+4*k,SX),'xp')
                if k<3: p("  s_add_u32 s53, s53, 16384")
    if XP:
        p("  s_lshl_b32 s53, s2, 6\n  s_lshl_b32 s54, s38, 3\n  s_add_u32 s53, s53, s54\n  s_lshr_b32 s41, s53, 8\n  s_andn2_b32 s40, 4, s41")
        p("  v_lshrrev_b32 v20, 3, v2\n  v_add_u32 v20, s53, v20\n  v_lshlrev_b32 v20, 11, v20\n  v_and_b32 v1, 1, v2\n  v_lshl_add_u32 v20, v1, 6, v20\n  v_bfe_u32 v1, v2, 1, 2")
        p("  s_sub_u32 s53, s40, 1\n  v_add_u32 v21, s53, v1\n  v_mov_b32 v22, s41\n  v_cmp_eq_u32 vcc, 0, v1\n  v_cndmask_b32 v21, v21, v22, vcc\n  v_lshl_add_u32 v21, v21, 7, v20")
        p.v("  buffer_load_dword v23, v21, %s, 0 offen"%SX,'xp')
        p("  s_xor_b32 s53, s40, 4\n  v_add_u32 v21, s53, v1\n  s_add_u32 s53, s40, 3\n  v_mov_b32 v24, s53\n  v_cmp_eq_u32 vcc, v21, v22\n  v_cndmask_b32 v21, v21, v24, vcc\n  v_lshl_add_u32 v21, v21, 7, v20")
        if XP==1: p.wait('xp')
        p.v("  buffer_load_dword v23, v21, %s, 0 offen"%SX,'xp')
        if not SPARE: p("  s_cmp_ge_u32 s2, 28\n  s_cbranch_scc1 L_drain")
    p("  s_mov_b32 s56, %d\n  s_mov_b32 s57, %d\n  s_mov_b32 s58, %d\n  s_mov_b32 s59, 0\n  s_mov_b32 s55, %d\n  v_mov_b32 v15, 0x7ff00000"%(64*14336,WST,512*R,NP))
    if SPARE:
        p("  s_cmp_lt_u32 s2, 28\n  s_cbranch_scc1 L_pp")
        p("  s_mov_b32 s56, 512\n  s_mov_b32 s57, %d\n  s_mov_b32 s58, %d\n  s_mov_b32 s59, 4096\n  s_mov_b32 s51, 6"%(16*WST,64*128*R))
        p("L_pl:\n  s_add_u32 m0, m0, 4096\n  v_add_u32 v16, 256, v16\n  s_sub_u32 s51, s51, 1\n  buffer_load_dword v16, %s, 0 offen lds\n  buffer_load_dword v16, %s, s50 offen offset:256 lds"%(SL,SL))
        p("  s_cmp_lg_u32 s51, 0\n  s_cbranch_scc1 L_pl\n  s_branch L_pq")
        p("L_pp:\n  s_mov_b32 s22, %d\nL_pq:"%(15*64*14336))
        p.vm.append('lut')
    load_e(p)
    task_addr(p)
    ND=2; SHOT=False
    PW=g('pw',2)
    if PW==1:
        nonce(p)
        p("  s_lshl_b32 s53, s37, %d\n  s_add_u32 s53, s53, %d\n  s_mov_b32 s63, 0"%(13+LR,FOFF))
        p("  s_cmp_eq_u32 s38, 0\n  s_cbranch_scc0 L_pw1")
        p("  v_mov_b32 v12, s53\nL_pw0:\n  buffer_load_dwordx2 v[20:21], v12, %s, 0 offen sc1\n  s_add_u32 s63, s63, 1\n  s_waitcnt vmcnt(0)\n  v_cmp_ne_u64 vcc, v[20:21], v[10:11]\n  s_cbranch_vccz L_pw1"%SW)
        p("  s_cmp_lt_u32 s63, 20000\n  s_cbranch_scc1 L_pw0\nL_pw1:\n  s_barrier")
    if PW==2: p.wait('lut')
    if PW==3: p("  s_waitcnt vmcnt(0)")
    for b in range(ND):
        qload(p,32+16*b); p("  v_add_u32 v4, s56, v4")
        for k in range(2 if b<ND-1 else 0): p.v("  buffer_load_dword v17, v15, %s, 0 offen"%SQ,'dummy')
    if PW!=1: nonce(p)
    p("  s_mov_b32 s60, 0\n  s_mov_b32 s61, 0\n  s_mov_b32 s62, 0")
    p.wait('lut')
    p("  s_barrier")
    lst('lut',pnames,'lut')
    p("L_p:")
    for b in range(ND):
        lookup(p,32+16*b,6*(ND-1),120+8*b)
        p("  s_cmp_eq_u32 s62, 0\n  s_cbranch_scc1 L_pa%d"%b); flag(p,4,"s61"); p("  s_add_u32 s61, s61, s58"+("\n  s_add_u32 s61, s61, s58" if SHOT and b==0 else "")+"\nL_pa%d:"%b)
        wstore(p,120+8*b,"s60")
        qload(p,32+16*b)
        p("  v_add_u32 v4, s56, v4\n  v_add_u32 v5, s59, v5\n  s_add_u32 s62, s62, 1\n  s_add_u32 s60, s60, s57")
        if SHOT and b==1: p("  v_add_u32 v4, s56, v4\n  s_add_u32 s60, s60, s57")
        if ST:
            for it in (0,1,2,5,6,7):
                if it%ND==b:
                    n=len(pnames)
                    p("  s_cmp_eq_u32 s62, %d\n  s_cbranch_scc0 L_ps%d\n  s_memrealtime s[%d:%d]\nL_ps%d:"%(it+1,n,80+2*n,81+2*n,n)); pnames.append('s%d'%it)
        p("  s_cmp_lt_u32 s62, s55\n  s_cbranch_scc%d %s"%((1,"L_p") if b==ND-1 else (0,"L_pe")))
    p("L_pe:")
    flag(p,4,"s61")
    lst('end',pnames,'end')
    p("  s_cmp_eq_u32 s38, 0\n  s_cbranch_scc0 L_pz")
    arrive(p)
    p("  s_cmp_eq_u32 s2, 0\n  s_cbranch_scc0 L_pz\n  s_mov_b32 s63, 0\n  v_lshlrev_b32 v12, 6, v2\n  v_add_u32 v12, %d, v12"%AOFF)
    p("L_pw:")
    if not SPARE: p("  v_mov_b32 v13, 28\n  v_max_u32 v13, v13, v2")
    for k in range(4): p("  s_mov_b32 s53, %d\n  buffer_load_dwordx2 v[%d:%d], v12, %s, s53 offen sc1"%(4096*k,20+2*k,21+2*k,SW))
    p("  s_add_u32 s63, s63, 1\n  s_waitcnt vmcnt(0)\n  v_cmp_ne_u64 s[52:53], v[20:21], v[10:11]")
    if not SPARE: p("  s_and_b32 s52, s52, 0x0fffffff")
    for k in range(1,4): p("  v_cmp_ne_u64 vcc, v[%d:%d], v[10:11]\n  s_or_b64 s[52:53], s[52:53], vcc"%(20+2*k,21+2*k))
    p("  s_cbranch_scc0 L_pv\n  s_cmp_lt_u32 s63, %d\n  s_cbranch_scc1 L_pw"%(1 if g('ponly',0) else 20000))
    p("L_pv:\n  v_mov_b32 v12, %d\n  s_mov_b64 exec, 1\n  buffer_store_dwordx2 v[10:11], v12, %s, 0 offen sc1\n  s_mov_b64 exec, -1\nL_pz:"%(EOFF,SW))
    if ST:
        lout(pnames,0)
        open('names.txt','w').write(" ".join(names)+"\n"+" ".join(pnames))
    p("L_drain:\n  s_waitcnt vmcnt(0)\nL_done:\n  s_endpgm")
    return single(a.text(),256,512,LDSZ,160+96,102,160)
if __name__=="__main__":
    kw=dict(x.split('=') for x in sys.argv[1:])
    kw={k:(int(v) if v.lstrip('-').isdigit() else v) for k,v in kw.items()}
    print(gen(**kw))
```

```python
import sys,struct
from common import *
from gc2 import Em

XST=32768; WST=16384; BUF=XST+WST
GLUT=3*BUF; LDSZ=GLUT+4096
FOFF=0x700000; EOFF=0x900000; AOFF=0x901000; WSZ=0x905000
SX,SQ,SL,SW,SO="s[16:19]","s[20:23]","s[24:27]","s[28:31]","s[32:35]"
ACC=16; PS,QS=0,48
KU=8

def gen(**P):
    g=P.get
    a=Em(); ST=g('st',0); R=g('R',1); LR=R.bit_length()-1
    NS=g('ns',3); SPARE=g('spare',1)
    waux=g('waux','sc1'); laux=g('laux','sc1'); oaux=g('oaux','sc0 sc1')
    names=[]; pnames=[]
    def stamp(n,alt=None,alt2=None):
        if g('cs',0)==1: n=alt
        if g('cs',0)==2: n=alt2 if alt2 is not None else (n if n in (0,6) else None)
        if ST and n is not None: a("  s_memrealtime s[%d:%d]\n  s_memtime s[%d:%d]"%(64+4*n,65+4*n,66+4*n,67+4*n))
    def lst(nm,names=names,sel='lut,fl,B0,chk1,B1,B2,B3,B8,B13,B15'):
        if ST and nm in g('sn',sel).split(','):
            n=len(names); assert n<11
            a("  %s s[%d:%d]"%("s_memtime" if g('lm',0) else "s_memrealtime",80+2*n,81+2*n)); names.append(nm)
    def lout(names,wave):
        a("  s_waitcnt lgkmcnt(0)")
        for n in range(len(names)): a("  v_writelane_b32 v140, s%d, %d"%(80+2*n,n))
        a("  s_cmp_eq_u32 s38, %d\n  s_cbranch_scc0 L_done\n  s_mov_b32 s30, 0x10000000\n  s_lshl_b32 s3, s2, 8\n  s_add_u32 s3, s3, %d\n  v_lshl_add_u32 v9, v2, 2, s3\n  buffer_store_dword v140, v9, s[28:31], 0 offen"%(wave,(16<<20)+32768))
    def load_e(e): e("  s_add_u32 s10, s28, %d\n  s_addc_u32 s11, s29, 0\n  s_load_dwordx2 s[6:7], s[10:11], 0"%EOFF)
    def nonce(e,v=True):
        e("  s_waitcnt lgkmcnt(0)\n  s_mul_i32 s8, s6, 1664525\n  s_mul_i32 s9, s7, 22695477\n  s_add_u32 s8, s8, 1013904223\n  s_add_u32 s9, s9, 1")
        if v: e("  v_mov_b32 v10, s8\n  v_mov_b32 v11, s9")
    def arrive(e):
        e("  s_lshl_b32 s3, s2, 6\n  s_add_u32 s3, s3, %d\n  v_mov_b32 v12, s3\n  s_mov_b64 exec, 1"%AOFF)
        e("  buffer_store_dwordx2 v[10:11], v12, %s, 0 offen sc1\n  s_mov_b64 exec, -1"%SW)
    TR=g('tr',0)
    CM=g('cm',1)
    def taddr(e,scr_s):
        if CM:
            e("  v_lshrrev_b32 v1, 4, v3\n  v_lshlrev_b32 v1, 10, v1\n  v_lshl_add_u32 v1, v9, 3, v1\n  v_and_b32 v6, 15, v3\n  v_lshl_add_u32 v6, v6, 4, v1\n  v_add_u32 v6, %s, v6"%scr_s)
            e("  v_lshl_add_u32 v7, v2, 4, %s"%scr_s)
            return
        if TR:
            e("  v_lshrrev_b32 v1, 3, v3\n  v_lshlrev_b32 v1, 9, v1\n  v_lshl_add_u32 v1, v9, 3, v1\n  v_and_b32 v6, 1, v3\n  v_lshl_add_u32 v1, v6, 8, v1\n  v_bfe_u32 v6, v3, 1, 2\n  v_lshl_add_u32 v6, v6, 6, v1\n  v_add_u32 v6, %s, v6"%scr_s)
            e("  v_lshl_add_u32 v7, v2, 4, %s"%scr_s)
            return
        e("  v_and_b32 v1, 1, v3\n  v_lshlrev_b32 v1, 10, v1\n  v_lshl_add_u32 v1, v9, 3, v1\n  v_lshrrev_b32 v6, 1, v3\n  v_lshl_add_u32 v6, v6, 4, v1\n  v_add_u32 v6, %s, v6"%scr_s)
        e("  v_lshl_add_u32 v7, v2, 4, %s"%scr_s)
    def qload(e,Q):
        for i in range(4): e.v("  buffer_load_dwordx4 v[%d:%d], v4, %s, %s offen %s"%(Q+4*i,Q+3+4*i,SQ,"s%d"%(44+i) if i else "0",g('qaux','nt')),'q')
    def lookup(e,Q,young,O,dma=None,hook=None):
        for i in range(4):
            e("  s_waitcnt vmcnt(%d)"%(3-i+young+(i if dma else 0)))
            for j in range(4): e("  v_lshl_add_u32 v%d, v%d, 8, v5"%(Q+4*i+j,Q+4*i+j))
            for j in range(4): e("  ds_read_u16 v%d, v%d offset:%d"%(96+4*i+j,Q+4*i+j,(j>>1)*128+(j&1)*2))
            if dma: e.v(dma[i],'x0')
        if hook: hook()
        e("  s_waitcnt lgkmcnt(8)")
        for j in range(4): e("  v_lshl_or_b32 v%d, v%d, 16, v%d"%(112+2*j,100+j,96+j))
        for j in range(4):
            e("  s_waitcnt lgkmcnt(3)")
            e("  v_lshl_or_b32 v%d, v%d, 16, v%d"%(113+2*j,108+j,104+j))
            e("  ds_write_b64 v6, v[%d:%d] offset:%d"%(112+2*j,113+2*j,(16 if TR else 256)*j))
        e("  s_waitcnt lgkmcnt(0)")
        for j in range(2): e("  ds_read_b128 v[%d:%d], v7 offset:%d"%(O+4*j,O+3+4*j,1024*j))
    def wstore(e,O,so):
        for j in range(2):
            e("  s_waitcnt lgkmcnt(%d)"%(1-j))
            e("  buffer_store_dwordx4 v[%d:%d], v8, %s, %s offen offset:%d %s"%(O+4*j,O+3+4*j,SW,so,1024*j,waux))
    def flag(e,n,so):
        e("  s_waitcnt vmcnt(%d)\n  s_mov_b64 exec, %d"%(n,(1<<R)-1))
        e("  buffer_store_dwordx2 v[10:11], v14, %s, %s offen %s\n  s_mov_b64 exec, -1"%(SW,so,waux))

    HS=g('hs',0)
    def task_addr(e):
        e("  s_lshl_b32 s53, s38, 11\n  s_add_u32 s53, s53, %d"%XST)
        taddr(e,"s53")
        e("  s_lshl_b32 s53, s37, 18\n  s_lshl_b32 s54, s52, 11\n  s_add_u32 s53, s53, s54\n  v_lshl_add_u32 v8, v2, 4, s53")
        e("  s_lshl_b32 s53, s37, 6\n  s_lshr_b32 s54, s52, 1\n  s_add_u32 s53, s53, s54\n  s_lshl_b32 s53, s53, %d\n  s_and_b32 s54, s52, 1\n  s_lshl_b32 s54, s54, 3\n  s_add_u32 s53, s53, s54\n  s_add_u32 s53, s53, %d\n  v_lshl_add_u32 v14, v2, 7, s53"%(7+LR,FOFF))
    def sig(e,j,dst,sh,add=0):
        if HS and j==1: j=8
        elif HS and 1<j<=8: j-=1
        if j>=8: e("  s_mov_b32 %s, %d"%(dst,(j<<sh)+add)); return
        if g('rot',1)==0: e("  s_add_u32 %s, s36, %d\n  s_and_b32 %s, %s, 7\n  s_lshl_b32 %s, %s, %d"%(dst,j,dst,dst,dst,dst,sh))
        elif j==0: e("  s_lshl_b32 %s, s36, %d"%(dst,sh))
        elif j<5: e("  s_add_u32 %s, s40, %d\n  s_lshl_b32 %s, %s, %d"%(dst,j-1,dst,dst,sh))
        else: e("  s_xor_b32 %s, s40, %d\n  s_cmp_ge_u32 %s, s36\n  s_addc_u32 %s, %s, 0\n  s_lshl_b32 %s, %s, %d"%(dst,4+j-5,dst,dst,dst,dst,dst,sh))
        if add: e("  s_add_u32 %s, %s, %d"%(dst,dst,add))
    def touch_addr(e):
        e("  s_lshl_b32 s53, s37, 2\n  s_add_u32 s53, s53, s39\n  s_mul_i32 s53, s53, 3\n  s_min_u32 s53, s53, 253\n  s_lshl_b32 s54, s36, 8\n  s_add_u32 s53, s53, s54\n  s_lshl_b32 s53, s53, 11")
        e("  s_add_u32 s12, s16, s53\n  s_addc_u32 s13, s17, 0")
    def touch(e,j,d=68):
        if g('touch',1) and j<16:
            sig(e,j,"s58",7)
            for r in range(3):
                for h in range(2): e("  s_load_dword s%d, s[12:13], s58 offset:%d"%(d+2*r+h,r*2048+64*h))

    def xdma(s,l,hs=(0,1)):
        if 0 in hs: sig(l,s,"s41",7)
        for h in hs:
            if s==15 and h==0 and g('x15',1): l("  s_lshr_b32 s53, s60, 1\n  s_add_u32 m0, s53, %d\n  s_nop 0"%GLUT)
            else: l("  s_add_u32 m0, s60, %d"%((s%3)*BUF+4096*h)+("\n  s_add_u32 s41, s41, 65536" if h else "\n  s_nop 0"))
            for i in range(4): l.v("  buffer_load_dwordx4 v%d, %s, s41 offen offset:%d %s lds"%(16+i,SX,1024*i,g('xaux','')),'x%d'%s)
    CX=g('cx',0) and not g('xi',1)
    a("  s_cmp_ge_u32 s2, 256\n  s_cbranch_scc1 L_done")
    stamp(0,0)
    a("  s_load_dwordx2 s[24:25], s[0:1], 16\n  s_load_dwordx2 s[20:21], s[0:1], 8\n  s_load_dwordx2 s[28:29], s[0:1], 40\n  s_load_dwordx2 s[16:17], s[0:1], 0\n  s_load_dwordx2 s[32:33], s[0:1], 24")
    assert not g('xp',0) and not g('mm',0)
    def srds(e,L):
        for d,sz in L: e("  s_mov_b32 s%d, %d\n  s_mov_b32 s%d, 0x20000"%(d+2,sz,d+3))
    def head(e,lb):
        e("  v_lshrrev_b32 v1, 6, v0\n  v_and_b32 v3, 31, v0\n  v_readfirstlane_b32 s38, v1\n  v_bfe_u32 v9, v0, 5, 1")
        srds(e,((24,114688),(20,14680064)))
        e("  v_mul_u32_u24 v1, %d, v9\n  v_lshl_add_u32 v4, v3, 4, v1\n  v_lshlrev_b32 v1, 3, v3\n  v_lshl_add_u32 v16, v9, 2, v1"%(4*14336))
        e("  s_mul_i32 s53, s38, 14336\n  s_lshl_b32 s54, s37, 8\n  s_add_u32 s53, s53, s54\n  v_add_u32 v16, s53, v16\n  s_lshl_b32 s53, s38, 9\n  s_add_u32 m0, s53, %s\n  s_movk_i32 s50, %d"%(lb,7168-256))
        e("  s_lshl3_add_u32 s52, s36, s38\n  s_mul_i32 s53, s52, %d\n  s_lshl1_add_u32 s53, s54, s53\n  v_add_u32 v4, s53, v4"%(8*14336))
        e("  s_movk_i32 s45, 14336\n  s_movk_i32 s46, 28672\n  s_mov_b32 s47, 43008")
    def rest(e,lb):
        if g('op',2)!=2 or not g('sf0',0): srds(e,((28,WSZ),(16,4194304),(32,14680064)))
        e("  v_and_b32 v2, 63, v0\n  v_lshlrev_b32 v5, 2, v3\n  s_and_b32 s39, s38, 3")
        if lb: e("  v_add_u32 v5, %d, v5"%lb)
    OP=g('op',2)
    if OP==0: a("  s_cmp_lt_u32 s2, 32\n  s_cbranch_scc1 L_prod")
    a("  s_and_b32 s3, s2, 1\n  s_bfe_u32 s36, s2, 0x20003\n  s_lshl2_add_u32 s36, s3, s36")
    a("  s_bfe_u32 s3, s2, 0x20001\n  s_mul_i32 s3, s3, 7\n  s_lshr_b32 s37, s2, 5\n  s_add_u32 s37, s37, s3\n  s_sub_u32 s37, s37, 1")
    if OP==2:
        a("  s_sub_u32 s3, s2, 28\n  s_mul_i32 s53, s3, 7\n  s_cmp_lt_u32 s3, 4")
        a("  s_cselect_b32 s51, 15, 8\n  s_cselect_b32 s53, s53, s2" if SPARE else "  s_cbranch_scc1 L_done\n  s_mov_b32 s51, 8\n  s_mov_b32 s53, s2")
        a("  s_cmp_lt_u32 s2, 32\n  s_cselect_b32 s36, s51, s36\n  s_cselect_b32 s37, s53, s37\n  s_cselect_b32 s51, 0, %d"%GLUT)
        head(a,"s51")
        if g('sf0',0): srds(a,((28,WSZ),(16,4194304),(32,14680064)))
        if g('pi',3)==1: a("  v_and_b32 v20, 63, v0\n  v_lshlrev_b32 v20, 20, v20")
        a("  s_cmp_lt_u32 s2, 32")
    else: head(a,GLUT)
    if OP==1: a("  s_cmp_lt_u32 s2, 32\n  s_cbranch_scc1 L_prod")
    a("  s_waitcnt lgkmcnt(0)")
    LL=g('ll',0)
    if ST: names.append("start"); a("  s_mov_b32 s80, s64")
    lst('ka')
    def lutdma(e,v="v16"):
        e.v("  buffer_load_dword %s, %s, 0 offen lds"%(v,SL),'lut'); e.v("  buffer_load_dword %s, %s, s50 offen offset:256 lds"%(v,SL),'lut')
    if not LL: lutdma(a)
    def pages(e,L):
        if not L: return
        if g('pi',3)!=1: e("  v_and_b32 v20, 63, v0\n  v_lshlrev_b32 v20, 20, v20")
        for k,srd in enumerate(L): e("  buffer_load_dword v%d, v20, %s, 0 offen"%(64+k,srd))
    assert OP==2 and not HS
    PE=g('pe',0); PI=g('pi',3)
    def ipf(e):
        n=g('ip',8)
        if not n: return
        e("  s_getpc_b64 s[14:15]\nL_pc:\n  s_lshr_b32 s53, s2, 3\n  s_lshl3_add_u32 s53, s53, s38\n  s_mul_i32 s53, s53, %d\n  s_min_u32 s53, s53, L_end-%s_kernel-%d\n  s_sub_u32 s14, s14, L_pc-%s_kernel\n  s_subb_u32 s15, s15, 0"%(64*n,NAME,64*n,NAME))
        for k in range(n): e("  s_load_dword s%d, s[14:15], s53 offset:%d"%(68+k,64*k))
    PG=(SQ,SW,SX,SO)[:PE]
    if PI==0: a("  s_cbranch_scc1 L_prod")
    if PI in (1,3): a("  s_cbranch_scc1 L_h")
    if PI==2:
        a("  s_cbranch_scc0 L_ng"); pages(a,PG); ipf(a); a("  s_branch L_prod\nL_ng:")
    PK=g('pk',0)
    if PK:
        load_e(a)
        a("  s_and_b32 s3, s36, 3\n  s_cmp_ge_u32 s3, %d\n  s_cbranch_scc0 L_q\n  s_waitcnt lgkmcnt(0)\nL_q:"%PK)
    qload(a,32)
    lst('qi')
    if PI==3:
        load_e(a); a("  s_branch L_ng\nL_h:"); pages(a,PG); ipf(a); a("  s_branch L_prod\nL_ng:")
    if PI==1:
        a("L_h:\n  s_cselect_b64 exec, -1, 0"); pages(a,PG); a.vm+=['pg']*PE
        a("  s_mov_b64 exec, -1\n  s_cbranch_scc1 L_prod")
    if not PK and PI!=3: load_e(a)
    rest(a,GLUT)
    if LL:
        a("  s_mul_i32 s53, s38, 14336\n  s_lshl_b32 s54, s37, 8\n  s_add_u32 s53, s53, s54\n  v_mov_b32 v21, v16")
        if LL==1:
            a("  s_and_b32 s54, s36, 3\n  s_lshl_b32 s54, s54, 6\n  s_add_u32 s53, s53, s54\n  s_load_dword s68, s[24:25], s53\n  s_load_dword s69, s[24:25], s53 offset:7168")
        else:
            for k in range(8): a("  s_load_dword s%d, s[24:25], s53 offset:%d"%(68+k,(k>>2)*7168+(k&3)*64))
    task_addr(a); touch_addr(a)
    a("  s_andn2_b32 s40, 4, s36")
    if g('t0',0) and not g('xp',0):
        a("  s_cmp_ge_u32 s38, 4\n  s_cbranch_scc%d L_la"%(g('t0',0)-1)); touch(a,0,92); a("L_la:")
    a("  v_and_b32 v3, 15, v2\n  v_lshrrev_b32 v9, 4, v2")
    a("  v_lshrrev_b32 v1, 1, v3\n  v_xor_b32 v1, v1, v9\n  v_lshlrev_b32 v1, 4, v1\n  v_lshl_add_u32 v144, v3, 7, v1\n  s_lshl_b32 s54, s38, 13\n  v_add_u32 v144, s54, v144\n  v_xor_b32 v145, 64, v144")
    a("  v_lshlrev_b32 v1, 11, v9\n  v_lshl_add_u32 v146, v3, 4, v1\n  v_add_u32 v146, %d, v146"%XST)
    a("  s_lshl_b32 s52, s36, 8\n  s_lshl_b32 s53, s38, 6\n  s_add_u32 s52, s52, s53\n  s_mul_i32 s52, s52, 7168\n  s_lshl_b32 s53, s37, 8\n  s_add_u32 s52, s52, s53")
    if CM: a("  v_and_b32 v1, 1, v3\n  v_lshl_add_u32 v1, v9, 2, v1\n  v_mul_u32_u24 v1, 7168, v1\n  v_lshrrev_b32 v147, 1, v3\n  v_lshl_add_u32 v1, v147, 4, v1\n  v_add_u32 v147, s52, v1")
    elif TR: a("  v_mul_u32_u24 v1, 7168, v3\n  v_lshl_add_u32 v1, v9, 4, v1\n  v_add_u32 v147, s52, v1")
    else: a("  v_mul_u32_u24 v1, 28672, v9\n  v_lshl_add_u32 v1, v3, 4, v1\n  v_add_u32 v147, s52, v1")
    a("  v_lshrrev_b32 v20, 3, v2\n  v_lshlrev_b32 v20, 11, v20\n  v_lshrrev_b32 v1, 4, v2\n  v_xor_b32 v1, v1, v2\n  v_and_b32 v1, 7, v1\n  v_lshl_add_u32 v20, v1, 4, v20")
    a("  s_lshl_b32 s52, s36, 19\n  s_lshl_b32 s53, s39, 17\n  s_add_u32 s53, s52, s53\n  v_add_u32 v16, s53, v20\n  v_xor_b32 v17, 64, v16")
    a("  v_add_u32 v18, %d, v16\n  v_add_u32 v19, %d, v17\n  v_add_u32 v17, %d, v17\n  s_lshl_b32 s60, s39, 13"%(2*15360,3*15360,15360))
    a("  s_lshl_b32 s53, s37, 18\n  s_lshl_b32 s54, s39, 12\n  s_add_u32 s53, s53, s54\n  v_lshl_add_u32 v20, v2, 4, s53\n  s_add_u32 s61, s54, %d"%XST)
    a("  s_lshl_b32 s53, s37, %d\n  s_lshl_b32 s54, s39, %d\n  s_add_u32 s53, s53, s54\n  s_and_b32 s54, s36, %d\n  s_lshl_b32 s54, s54, 7\n  s_add_u32 s53, s53, s54\n  s_add_u32 s53, s53, %d"%(13+LR,7+LR,R-1,FOFF))
    a("  s_add_u32 s4, s28, s53\n  s_addc_u32 s5, s29, 0")
    XI=g('xi',1); XP=g('xp',0)
    if LL: nonce(a); lutdma(a,"v21")
    if XI:
        sig(a,0,"s41",7)
        a("  s_lshr_b32 s53, s38, 2\n  s_lshl_b32 s54, s53, 16\n  s_add_u32 s41, s41, s54\n  s_lshl_b32 s53, s53, 12\n  s_add_u32 m0, s60, s53")
    NL=g('nl',0)
    lst('pre')
    if not LL and not NL: nonce(a)
    lst('non')
    a.wait('lut')
    a("  s_barrier")
    lst('lut')
    if g('cs',0)==1: stamp(0,1); a("  s_waitcnt vmcnt(0)"); stamp(0,2)
    lookup(a,32,PE if PI==1 else 0,148,["  buffer_load_dwordx4 v%d, %s, s41 offen offset:%d lds"%(16+i,SX,1024*i) for i in range(4)] if XI else None)
    wstore(a,148,"0"); a.vm+=['ws','ws']
    if NL: nonce(a)
    a("  s_cmp_ge_u32 s38, 4\n  s_cbranch_scc1 L_loader")

    c=a
    if g('cs',0)==1: stamp(0,3)
    if CX: xdma(0,c)
    if not XP: touch(c,1,92); touch(c,2,92)
    c("  v_mov_b32 v5, v144\n  v_mov_b32 v6, v145\n  v_mov_b32 v7, v146")
    for r in range(128): c("  v_mov_b32 v%d, 0"%(ACC+r))
    flag(c,c.cnt('ws'),"0")
    if g('c3',0): touch(c,3,92)
    for k in range(16): c("  s_mov_b32 s%d, %d"%(44+k,((k>>2)*16+(k&3))*7168))
    c("  s_mov_b32 s60, 0\n  s_mov_b32 s61, 0")
    if g('prio',0): c("  s_setprio 1")
    def frag(setb,kind,n):
        b=setb+(4*n if kind=='x' else 16+4*n)
        return "a[%d:%d]"%(b,b+3)
    def reads(setb,ks,ms=(0,1,2,3),vx=5,vw=7):
        xs=["  ds_read_b128 %s, v%d offset:%d"%(frag(setb,'x',i),vx+ks,2048*i) for i in ms]
        ws=["  ds_read_b128 %s, v%d offset:%d"%(frag(setb,'w',t),vw,ks*4*2048+256*t) for t in range(8)]
        return [ws[0]]+xs+ws[1:]
    def block(setb,fill,ms=(0,1,2,3),imajor=False):
        order=[(t,i) for i in ms for t in range(8)] if imajor else [(t,i) for t in range(8) for i in ms]
        for n,(t,i) in enumerate(order):
            acc=ACC+(i*8+t)*4
            c("  v_mfma_f32_16x16x32_bf16 v[%d:%d], %s, %s, v[%d:%d]"%(acc,acc+3,frag(setb,'x',i),frag(setb,'w',t),acc,acc+3))
            for x in fill.get(n,[]): c(x)
    def spread(items,first,step,fill=None):
        fill={} if fill is None else fill
        for k,x in enumerate(items): fill.setdefault(first+k*step,[]).append(x)
        return fill
    def even(items,n,fill,first=0):
        for k,x in enumerate(items): fill.setdefault(first+k*n//len(items),[]).append(x)
        return fill
    tsel=[0]
    def cvst(i,r):
        if CM:
            n=tsel[0]; tsel[0]+=1
            T,rp=r>>1,2*(r&1); tb=152+4*(n%2)
            cv=lambda d,p,row:"  v_cvt_pk_bf16_f32 v%d, v%d, v%d"%(d,ACC+(i*8+4*T+2*p)*4+row,ACC+(i*8+4*T+2*p+1)*4+row)
            A=[cv(148,0,rp),cv(149,1,rp)]; B=[cv(150,0,rp+1),cv(151,1,rp+1)]
            cn=lambda d,x,y:"  v_cndmask_b32_dpp v%d, v%d, v%d, vcc quad_perm:[1,0,3,2] row_mask:0xf bank_mask:0xf"%(d,x,y)
            lo=[cn(tb,150,148),cn(tb+1,151,149)]; hi=[cn(tb+2,148,150),cn(tb+3,149,151)]
            L=(B+A+lo+["  s_not_b64 vcc, vcc"]+hi) if n%2==0 else (A+B+hi+["  s_not_b64 vcc, vcc"]+lo)
            L.append("  buffer_store_dwordx4 v[%d:%d], v147, %s, s%d offen offset:%d %s"%(tb,tb+3,SO,44+i*4+rp,128*T,oaux))
            return L
        tb=148+4*(tsel[0]%3); tsel[0]+=1
        if TR:
            L=["  v_cvt_pk_bf16_f32 v%d, v%d, v%d"%(tb+p,ACC+(i*8+2*r)*4+2*p,ACC+(i*8+2*r)*4+2*p+1) for p in range(4)]
            L.append("  buffer_store_dwordx4 v[%d:%d], v147, %s, s%d offen offset:%d %s"%(tb,tb+3,SO,44+i*4,64*r,oaux))
            return L
        L=["  v_cvt_pk_bf16_f32 v%d, v%d, v%d"%(tb+p,ACC+(i*8+2*p)*4+r,ACC+(i*8+2*p+1)*4+r) for p in range(4)]
        L.append("  buffer_store_dwordx4 v[%d:%d], v147, %s, s%d offen %s"%(tb,tb+3,SO,44+i*4+r,oaux))
        return L
    L15=g('l15',2) if g('ch',1) else 0
    XE15=g('x15',1)
    def chain():
        sp=[x.split(':') for x in str(g('ps','01:01,01:23,23:01,23:23')).split(',')]
        passes=[tuple(int(y) for y in x[0]) for x in sp]
        tsets=[tuple(t for y in x[1] for t in (2*int(y),2*int(y)+1)) if len(x)>1 else tuple(range(8)) for x in sp]
        assert TR or CM or all(len(T)==8 for T in tsets)
        S0=13
        units=[(s,(0,1,2,3),tuple(range(8))) for s in range(S0)]+[(s,H,T) for H,T in zip(passes,tsets) for s in range(S0,16)]
        pend=[S0+3*p+2 for p in range(len(passes))]
        if g('uo',0): units[S0+2],units[S0+3]=units[S0+3],units[S0+2]; pend[0]+=1
        def stores(p):
            L=sum([cvst(i,r) for i in passes[p] for r in range(4) if 2*r in tsets[p]],[])
            if p>=len(passes)-g('nla',0): L=[x.replace(oaux,g('la','')) for x in L]
            return L
        TC=g('tc',0)
        pairs=[]
        for u,(s,H,T) in enumerate(units):
            if u<S0 or TC: pairs+=[(u,t,i,(0,1)) for t in T for i in H]
            elif u==len(units)-1 and g('im',1): pairs+=[(u,t,i,(0,)) for t in T for i in H]+[(u,t,i,(1,)) for i in H for t in T]
            else: pairs+=[(u,t,i,(ks,)) for ks in (0,1) for t in T for i in H]
        ustart={}
        for n,(u,t,i,K) in enumerate(pairs): ustart.setdefault(u,n)
        first={}; last={}
        for n,(u,t,i,K) in enumerate(pairs):
            for ks in K:
                for k in (('x',u,i,ks),('w',u,t,ks)): first.setdefault(k,n); last[k]=n
        LT=g('lt',8 if TC else 16)
        def want(k):
            kind,u,j,ks=k
            if u<S0: return first[k]-12 if kind=='w' else ustart[u]-11+(0,0,1,1,2,4,5,6)[2*j+ks]
            w=first[k]-LT
            if g('tb',1) and not TC:
                H,T=units[u][1:]; nb=len(T)*len(H); b0=ustart[u]+ks*nb
                rank=(1+H.index(j)) if kind=='x' else (0 if j==T[0] else len(H)+T.index(j))
                w=b0-g('lb',16)+rank//g('rpt',2)
            if w<ustart[S0] and not TC: w=ustart[S0]-(ustart[S0]-w+1)//2
            return max(w,ustart[S0]-12)
        keys=sorted(first,key=lambda k:(want(k),first[k],k[0]=='x',k[3]))
        areg={0:(144,146),1:(8,10),2:(11,13)}
        slot={}; owner=[None]*24; early=[False]; mid={}
        def place(k,n):
            kind,u,j,ks=k
            if u<S0: sl=(u&1)*8+2*j+ks if kind=='x' else 16+(j&3)*2+ks
            else:
                fr=[q for q in range(24) if owner[q] is None or last[owner[q]]<=n]
                if not fr: return None
                sl=min(fr,key=lambda q:-1 if owner[q] is None else last[owner[q]])
            assert owner[sl] is None or last[owner[sl]]<=n,(k,n)
            early[0]=owner[sl] is None or last[owner[sl]]<n
            owner[sl]=k; slot[k]=sl
            s=units[u][0]; vx,vw=((5,7),(3,1))[u&1] if u<S0 else areg[s%3]
            if XE15 and s==15 and kind=='x' and j<2: vx=14
            if kind=='x': return "  ds_read_b128 a[%d:%d], v%d offset:%d"%(4*sl,4*sl+3,vx+ks,2048*j)
            return "  ds_read_b128 a[%d:%d], v%d offset:%d"%(4*sl,4*sl+3,vw,ks*8192+256*j)
        out=[]; issued={}
        def size(x): return 4 if (x.split()[0] in ('s_waitcnt','s_barrier','s_nop','s_cselect_b32','s_cbranch_scc0','s_sub_u32','s_not_b64') or x.endswith('s62') or (x.split()[0]=='v_add_u32' and ', s60,' in x)) else 8
        text={u:[] for u in range(-1,len(units))}
        RPG=g('rpg',2); kq=list(keys); opened=0
        fl={}
        def at(n,x): fl.setdefault(n,[]).append(x)
        bar={}
        for u in range(S0):
            b=ustart[u]; bar[b+19]=u+1
            if u<S0-1:
                vx,vw=((3,1),(5,7))[u&1]
                at(b+1,"  s_cmp_eq_u32 s60, %d"%(3*BUF)); at(b+2,"  s_cselect_b32 s60, 0, s60"); at(b+2,"  v_add_u32 v%d, s60, v146"%vw)
                at(b+11,"  v_add_u32 v%d, s60, v144"%vx); at(b+13,"  v_add_u32_e64 v%d, s60, v145"%(vx+1)); at(b+31,"  s_add_u32 s60, s60, s62")
                if u&1: at(b+31,"  s_sub_u32 s61, s61, 1")
            else:
                if XE15: at(b+14,"  v_add_u32_e64 v14, s63, v144"); at(b+15,"  v_add_u32_e64 v15, s63, v145")
                for q,b3 in enumerate((1,2)):
                    vx,vw=areg[b3]
                    at(b+2+6*q,"  v_add_u32 v%d, %d, v144"%(vx,b3*BUF)); at(b+3+6*q,"  v_add_u32 v%d, %d, v145"%(vx+1,b3*BUF)); at(b+6+6*q,"  v_add_u32 v%d, %d, v146"%(vw,b3*BUF))
        for p in range(len(passes)-1):
            b=ustart[pend[p]+1]; e=ustart.get(pend[p+1]+1,len(pairs))
            L=stores(p)
            span=max(1,int((e-b-1)*g('sf',50)/100))
            if g('av',0):
                gaps=[n for n in range(b+2,b+2+span) if (n-b)%8>=g('av')]
                for q,x in enumerate(L): at(gaps[q*len(gaps)//len(L)],x)
                continue
            for q,x in enumerate(L): at(b+(0 if TC else 2)+q*span//len(L),x)
        for n in range(-12,len(pairs)):
            T=text[pairs[n][0] if n>=0 else -1]
            if n>=0:
                u,t,i,K=pairs[n]; acc=ACC+(i*8+t)*4
                for ks in K:
                    X,W=slot[('x',u,i,ks)],slot[('w',u,t,ks)]
                    assert ('x',u,i,ks) not in out and ('w',u,t,ks) not in out
                    if TR: X,W=W,X
                    T.append("  v_mfma_f32_16x16x32_bf16 v[%d:%d], a[%d:%d], a[%d:%d], v[%d:%d]"%(acc,acc+3,4*X,4*X+3,4*W,4*W+3,acc,acc+3))
            G=[]; mid.clear()
            if n in bar:
                G+=["  s_waitcnt lgkmcnt(0)","  s_barrier"]; out.clear(); opened=bar[n]
            G+=fl.get(n,[])
            k=0
            while kq and k<(RPG if n<ustart[S0] else g('rpt',3 if TC else 2)) and want(kq[0])<=n:
                s=units[kq[0][1]][0]
                if L15 and s==15 and kq[0][2]>=(2 if kq[0][0]=='x' else 4 if L15==2 else 8): s=16
                if s>opened and s<=S0: break
                r=place(kq[0],n)
                if r is None: break
                if s>opened: G.append("  s_barrier"); opened=s
                mid[len(G)]=early[0]
                G.append(r); out.append(kq[0]); issued[kq[0]]=n; kq.pop(0); k+=1
            if n+1<len(pairs) and n>=-1:
                need=lambda m:[(a_,pairs[m][0],b_,ks) for ks in pairs[m][3] for a_,b_ in (('x',pairs[m][2]),('w',pairs[m][1]))]
                for k in need(n+1): assert k in issued,(k,n)
                if any(k in out for k in need(n+1)):
                    idx=max(out.index(k) for k in need(n+1) if k in out)
                    while idx+1<len(out) and issued[out[idx+1]]<=n-(g('age',3) if n<ustart[S0]+(10**6 if TC else 0) else g('aget',5)): idx+=1
                    G.append("  s_waitcnt lgkmcnt(%d)"%min(15,len(out)-1-idx)); del out[:max(idx+1,len(out)-15)]
            if n>=0 and n+1 in ustart.values() and pairs[n][0]<S0-1 and pairs[n][0]&1: G.append("  s_cbranch_scc0 L_c")
            if n>=0 and sum(size(x) for x in G)%8: G.insert(len(G)-1 if G[-1].startswith("  s_cbranch") else len(G),"  s_nop 0")
            if g('mp',1) and n>=0 and len(pairs[n][3])==2 and len(G)>=2:
                k=0
                if size(G[0])==8 and mid.get(0,True): k=1
                elif G[0].split()[0]=='s_add_u32' and G[1].split()[0]=='s_sub_u32': k=2
                T[-1:-1]=G[:k]; G=G[k:]
            T+=G
        for u in range(2,S0-1): assert text[u]==text[u&1],u
        c("  s_mov_b32 s60, %d\n  s_mov_b32 s61, 5\n  s_mov_b32 s62, %d"%(BUF,BUF))
        if XE15: c("  s_lshl_b32 s63, s38, 12\n  s_sub_u32 s63, %d, s63"%GLUT)
        if CM: c("  s_mov_b32 vcc_lo, 0x55555555\n  s_mov_b32 vcc_hi, 0x55555555")
        stamp(1,4)
        c("  s_barrier")
        stamp(2,5)
        for x in text[-1][:-1]: c(x)
        c("  s_cmp_eq_u32 s38, 0\n  s_cbranch_scc0 L_c0")
        arrive(c)
        c("L_c0:\n"+text[-1][-1])
        c(".p2align 6\nL_c:")
        for x in text[0]+text[1]: c(x)
        stamp(3)
        for u in range(S0-1,len(units)):
            if (u-S0)%3==0: stamp(None,None,1+(u-S0)//3)
            for x in text[u]: c(x)
        stamp(None,None,5)
        stamp(4)
        if TC or not g('im',1) or len(passes[-1])<2 or len(tsets[-1])<8: c("  s_nop 7")
        c("L_fin:")
        for x in stores(len(passes)-1): c(x)
    def plain():
        stamp(1,4)
        c("  s_barrier")
        if CX: c("  s_waitcnt vmcnt(1)")
        stamp(2,5)
        for r in reads(PS,0): c(r)
        c("  s_cmp_eq_u32 s38, 0\n  s_cbranch_scc0 L_c0")
        arrive(c)
        c("L_c0:\n  s_waitcnt lgkmcnt(0)")
        NLOOP=15 if NS==0 else 15-NS
        f1={1:["  s_add_u32 s60, s60, %d"%BUF],3:["  s_cmp_eq_u32 s60, %d"%(3*BUF)],5:["  s_cselect_b32 s60, 0, s60\n  s_add_u32 s61, s61, 1"]}
        f2={0:["  v_add_u32 v7, s60, v146\n  v_add_u32 v5, s60, v144"],2:["  v_add_u32 v6, s60, v145\n  s_cmp_lt_u32 s61, %d"%NLOOP]}
        c(".p2align 6\nL_c:")
        block(PS,spread(reads(QS,1),1,2,dict(f1)))
        c("  s_waitcnt lgkmcnt(0)\n  s_barrier")
        block(QS,spread(reads(PS,0),1,2,dict(f2)))
        c("  s_waitcnt lgkmcnt(0)\n  s_cbranch_scc1 L_c")
        stamp(3)
        if NS==0:
            block(PS,spread(reads(QS,1),1,2))
            c("  s_waitcnt lgkmcnt(0)\n  s_nop 0")
            block(QS,{},imajor=True)
            stamp(4)
            for i in range(4):
                for r in range(4):
                    for x in cvst(i,r): c(x)
        else:
            H1,H2=(0,1),(2,3)
            S0=16-NS
            areg={0:(144,146),1:(8,10),2:(11,13)}
            setup=[]
            for b in (1,2):
                vx,vw=areg[b]
                setup+=["  v_add_u32 v%d, %d, v144"%(vx,b*BUF),"  v_add_u32 v%d, %d, v145"%(vx+1,b*BUF),"  v_add_u32 v%d, %d, v146"%(vw,b*BUF)]
            def rd(setb,s,ks,ms): return reads(setb,ks,ms,*areg[s%3])
            block(PS,spread(setup,2,2,spread(reads(QS,1),1,2)))
            c("  s_waitcnt lgkmcnt(0)\n  s_barrier")
            block(QS,spread(rd(PS,S0,0,H1),1,2))
            c("  s_waitcnt lgkmcnt(0)\n  s_nop 0")
            seq=[(s,ks,H) for H in (H1,H2) for s in range(S0,16) for ks in (0,1)]
            st1=sum([cvst(i,r) for i in H1 for r in range(4)],[])
            npart=min(2*NS-1,g('np',4)); per=(8+npart-1)//npart*5
            tl=cvst(2,0)+cvst(2,1)+cvst(2,2)+cvst(2,3)+cvst(3,0)+cvst(3,1)+cvst(3,2)+cvst(3,3)
            for n,(s,ks,H) in enumerate(seq):
                setb=PS if n%2==0 else QS; oth=QS if n%2==0 else PS
                f={}
                if n+1<len(seq):
                    s2,k2,Hn=seq[n+1]
                    spread(rd(oth,s2,k2,Hn),0,1,f)
                if H==H2:
                    k=n-2*NS
                    part=st1[k*per:(k+1)*per]
                    if part: even(part,15,f,1 if k else 2) if k else even(part,13,f,2)
                last=(n==len(seq)-1)
                if last: f.setdefault(15,[]).extend(tl[:0])
                block(setb,f,H,imajor=(last or n==2*NS-1))
                if last: break
                nb = (H==H1 and ks==0 and s<15)
                c("  s_waitcnt lgkmcnt(0)\n  "+("s_barrier" if nb else "s_nop 0"))
            stamp(4)
            for x in tl: c(x)
    if g('ch',1): chain()
    else: plain()
    if ST:
        stamp(5)
        c("  s_waitcnt vmcnt(0)")
        stamp(6,6)
        c("  s_waitcnt lgkmcnt(0)\n  s_cmp_eq_u32 s38, 0\n  s_cbranch_scc0 L_done\n  s_mov_b32 s30, 0x10000000")
        for n in range(7): c("  v_writelane_b32 v8, s%d, %d\n  v_writelane_b32 v8, s%d, %d"%(64+4*n,2*n,66+4*n,2*n+1))
        c("  s_lshl_b32 s3, s2, 6\n  s_add_u32 s3, s3, %d\n  v_lshl_add_u32 v9, v2, 2, s3\n  v_cmp_gt_u32 vcc, 16, v2\n  s_and_saveexec_b64 s[60:61], vcc\n  buffer_store_dword v8, v9, s[28:31], 0 offen"%((16<<20)+16384))
    c("  s_endpgm")

    l=Em(a.o); l.vm=['ws','ws']
    l("L_loader:")
    if g('lprio',0): l("  s_setprio %d"%g('lprio'))
    def wdma(s,I=None):
        if I is None: I=(0,2) if (s==15 and L15==2) else range(4)
        l("  s_add_u32 m0, s61, %d"%((s%3)*BUF)); sig(l,s,"s62",14)
        for i in I: l.v("  buffer_load_dwordx4 v20, %s, s62 offen offset:%d %s lds"%(SW,1024*i,laux),'W%d'%s)
    def poll(s,first=True):
        if first: sig(l,s,"s43",9+LR)
        l("  s_load_dwordx4 s[64:67], s[4:5], s43 glc")
    def check(s):
        l("  s_mov_b32 s63, 0\nL_sp%d:"%s)
        l("  s_waitcnt lgkmcnt(0)\n  s_xor_b64 s[10:11], s[64:65], s[8:9]\n  s_xor_b64 s[14:15], s[66:67], s[8:9]\n  s_or_b64 s[10:11], s[10:11], s[14:15]\n  s_cbranch_scc0 L_ok%d"%s)
        poll(s,False)
        l("  s_add_u32 s63, s63, 1\n  s_cmp_lt_u32 s63, 20000\n  s_cbranch_scc1 L_sp%d\n  s_waitcnt lgkmcnt(0)\nL_ok%d:"%(s,s))
    TD=g('td',4)
    X1=g('x1',1); D2=g('d2',0)
    if XP:
        touch0=touch
        def touch(e,j,d=68):
            if j>=8: touch0(e,j,d)
    XO=g('xo',0); TP=g('tp',2)
    if TP==2:
        for j in range(3,TD): touch(l,j)
    if not CX and not XI and XO!=1: xdma(0,l,(0,1) if XO==0 else (0,))
    if X1==2: xdma(1,l)
    lst('x0i')
    flag(l,l.cnt('ws'),"0"); l.vm.append('fl')
    lst('fl')
    if XO: xdma(0,l,(0,1) if XO==1 else (1,))
    if X1>=3: poll(1); xdma(1,l,(0,1) if X1==3 else (0,))
    if TP==1:
        for j in range(3,TD): touch(l,j)
    if not CX and not XI: l.wait('x0')
    l("  s_barrier")
    lst('B0')
    if X1<3: poll(1)
    units=[]
    for s in range(1,16): units+=[('x',s,0),('x',s,1),('w',s,0)]
    if X1==0: units[0:3]=[units[2],units[0],units[1]]
    if g('o1',0): units[0:6]=[units[int(ch)] for ch in str(g('o1'))[1:]]
    XS={2:2,3:2,4:1}.get(X1,0)
    units=units[XS:]
    if L15: units[-3:]=[units[-1],units[-3]]
    if XE15: units[-2:]=[units[-1],units[-2]]
    LD=[int(x) for x in str(g('ld','6')).split(',')]
    done=0; nt=4
    for i in range(14):
        k=min(len(units),(LD[i] if i<len(LD) else 3*(i+2))-XS+(1 if XE15 and i==12 else 0))
        for kind,s,h in units[done:k]:
            if kind=='x': xdma(s,l,(h,))
            else:
                check(s)
                if s==1: lst('chk1')
                if s<15: poll(s+1)
                wdma(s)
        done=k
        if TP: nt=max(nt,TD)
        for j in range(nt,min(i+TD,nt+1)+1): touch(l,j); nt=j+1
        l("  s_waitcnt vmcnt(%d)"%min(l.cnt('W%d'%(i+1)),l.cnt('x%d'%(i+1))))
        l("  s_barrier")
        lst('B%d'%(i+1))
    assert done==len(units)
    if L15:
        if L15==2: wdma(15,(1,3))
        xdma(15,l,(1,))
        l("  s_waitcnt vmcnt(%d)\n  s_barrier"%(4 if L15==1 else 6))
        lst('B15')
        l("  s_waitcnt vmcnt(0)\n  s_barrier")
    else:
        l.wait('W15')
        l("  s_barrier")
        lst('B15')
    if ST: lout(names,g('lw',4))
    if g('wf',0) and not ST:
        for k in range(8,16): l("  s_mov_b32 s%d, 0"%(44+k))
        l("  s_mov_b64 exec, 0\n  s_branch L_fin")
    l("  s_endpgm")

    p=Em(a.o); p.vm=['lut']
    p("L_prod:")
    if PI<2: ipf(p)
    rest(p,0)
    if PI==0: pages(p,PG)
    if OP==2: pass
    else:
        p("  s_mov_b32 s36, 8\n  s_mov_b32 s37, s2\n  s_sub_u32 s3, s2, 28\n  s_mul_i32 s53, s3, 7\n  s_cmp_lt_u32 s3, 4")
        p("  s_cselect_b32 s36, 15, s36\n  s_cselect_b32 s37, s53, s37" if SPARE else "  s_cbranch_scc1 L_done")
        head(p,0); rest(p,0)
        p("  s_waitcnt lgkmcnt(0)")
        p.vm=[]; lutdma(p)
    if ST: pnames.append("start"); p("  s_mov_b32 s80, s64")
    NP=8-SPARE
    PT=g('pt',0)
    if PT:
        p("  v_lshlrev_b32 v20, 20, v2")
        if PT==2: p("  s_waitcnt vmcnt(0)")
        for k,srd in enumerate((SW,SX,SO)): p.v("  buffer_load_dword v%d, v20, %s, 0 offen"%(64+k,srd),'xp')
    XL=g('xl',0)
    if XL:
        p("  s_and_b32 s53, s2, 1\n  s_lshl_b32 s53, s53, 2\n  s_lshr_b32 s54, s2, 3\n  s_add_u32 s41, s53, s54\n  s_andn2_b32 s40, 4, s41")
        p("  s_lshl_b32 s53, s41, 19\n  s_lshl_b32 s54, s38, 16\n  s_add_u32 s53, s53, s54\n  v_lshrrev_b32 v20, 3, v2\n  v_lshlrev_b32 v20, 11, v20\n  v_and_b32 v1, 7, v2\n  v_lshl_add_u32 v20, v1, 4, v20\n  v_add_u32 v20, s53, v20")
        for r in range(XL):
            p("  s_lshl_b32 s53, s%d, 7"%(41-r))
            for k in range(4):
                p.v("  buffer_load_dwordx4 v[%d:%d], v20, %s, s53 offen"%(64+4*k,67+4*k,SX),'xp')
                if k<3: p("  s_add_u32 s53, s53, 16384")
    if XP:
        p("  s_lshl_b32 s53, s2, 6\n  s_lshl_b32 s54, s38, 3\n  s_add_u32 s53, s53, s54\n  s_lshr_b32 s41, s53, 8\n  s_andn2_b32 s40, 4, s41")
        p("  v_lshrrev_b32 v20, 3, v2\n  v_add_u32 v20, s53, v20\n  v_lshlrev_b32 v20, 11, v20\n  v_and_b32 v1, 1, v2\n  v_lshl_add_u32 v20, v1, 6, v20\n  v_bfe_u32 v1, v2, 1, 2")
        p("  s_sub_u32 s53, s40, 1\n  v_add_u32 v21, s53, v1\n  v_mov_b32 v22, s41\n  v_cmp_eq_u32 vcc, 0, v1\n  v_cndmask_b32 v21, v21, v22, vcc\n  v_lshl_add_u32 v21, v21, 7, v20")
        p.v("  buffer_load_dword v23, v21, %s, 0 offen"%SX,'xp')
        p("  s_xor_b32 s53, s40, 4\n  v_add_u32 v21, s53, v1\n  s_add_u32 s53, s40, 3\n  v_mov_b32 v24, s53\n  v_cmp_eq_u32 vcc, v21, v22\n  v_cndmask_b32 v21, v21, v24, vcc\n  v_lshl_add_u32 v21, v21, 7, v20")
        if XP==1: p.wait('xp')
        p.v("  buffer_load_dword v23, v21, %s, 0 offen"%SX,'xp')
        if not SPARE: p("  s_cmp_ge_u32 s2, 28\n  s_cbranch_scc1 L_drain")
    p("  s_mov_b32 s56, %d\n  s_mov_b32 s57, %d\n  s_mov_b32 s58, %d\n  s_mov_b32 s59, 0\n  s_mov_b32 s55, %d\n  v_mov_b32 v15, 0x7ff00000"%(64*14336,WST,512*R,NP))
    if SPARE:
        p("  s_cmp_lt_u32 s2, 28\n  s_cbranch_scc1 L_pp")
        p("  s_mov_b32 s56, 512\n  s_mov_b32 s57, %d\n  s_mov_b32 s58, %d\n  s_mov_b32 s59, 4096\n  s_mov_b32 s51, 6"%(16*WST,64*128*R))
        p("L_pl:\n  s_add_u32 m0, m0, 4096\n  v_add_u32 v16, 256, v16\n  s_sub_u32 s51, s51, 1\n  buffer_load_dword v16, %s, 0 offen lds\n  buffer_load_dword v16, %s, s50 offen offset:256 lds"%(SL,SL))
        p("  s_cmp_lg_u32 s51, 0\n  s_cbranch_scc1 L_pl\n  s_waitcnt vmcnt(0)\n  s_branch L_pq")
        p("L_pp:\n  s_mov_b32 s22, %d\nL_pq:"%(15*64*14336))
        p.vm.append('lut')
    load_e(p)
    task_addr(p)
    ND=2; SHOT=False
    PW=g('pw',4)
    if PW==1:
        nonce(p)
        p("  s_lshl_b32 s53, s37, %d\n  s_add_u32 s53, s53, %d\n  s_mov_b32 s63, 0"%(13+LR,FOFF))
        p("  s_cmp_eq_u32 s38, 0\n  s_cbranch_scc0 L_pw1")
        p("  v_mov_b32 v12, s53\nL_pw0:\n  buffer_load_dwordx2 v[20:21], v12, %s, 0 offen sc1\n  s_add_u32 s63, s63, 1\n  s_waitcnt vmcnt(0)\n  v_cmp_ne_u64 vcc, v[20:21], v[10:11]\n  s_cbranch_vccz L_pw1"%SW)
        p("  s_cmp_lt_u32 s63, 20000\n  s_cbranch_scc1 L_pw0\nL_pw1:\n  s_barrier")
    QT=g('qt',0)
    def qtouch():
        for k in range(16): p("  s_load_dword s%d, s[12:13], s42 offset:%d"%(64+k,(k>>3)*57344+(k&7)*64))
        p("  s_add_u32 s42, s42, 14336")
    if QT: p("  s_mul_i32 s42, s52, %d\n  s_lshl_b32 s53, s37, 9\n  s_add_u32 s42, s42, s53\n  s_mul_i32 s53, s56, %d\n  s_add_u32 s42, s42, s53\n  s_mov_b32 s12, s20\n  s_mov_b32 s13, s21"%(8*14336,QT))
    def fill():
        for b in range(ND):
            qload(p,32+16*b); p("  v_add_u32 v4, s56, v4")
            for k in range(2 if b<ND-1 else 0): p.v("  buffer_load_dword v17, v15, %s, 0 offen"%SQ,'dummy')
    if HS:
        assert OP==2 and not g('pw0',0) and not g('xe',0) and not PT and not XL
        npg=0
        nonce(p)
        p("  s_waitcnt vmcnt(%d)\n  s_barrier"%(4+npg))
        lookup(p,32,npg,120); wstore(p,120,"0")
        p("  v_add_u32 v4, s56, v4\n  v_add_u32 v5, s59, v5\n  s_mov_b32 s60, s57\n  s_mov_b32 s61, s58\n  s_mov_b32 s62, 0\n  s_sub_u32 s55, s55, 1")
        if HS==2: flag(p,0,"0")
        fill()
        if HS==1: flag(p,10,"0")
    else:
        if PW==2: p.wait('lut')
        if PW==4: p("  s_waitcnt vmcnt(%d)"%PE)
        if PW==3: p("  s_waitcnt vmcnt(0)")
        fill()
        if PW!=1: nonce(p)
        if QT: qtouch()
        p("  s_mov_b32 s60, 0\n  s_mov_b32 s61, 0\n  s_mov_b32 s62, 0")
        p.wait('lut')
        p("  s_barrier")
    lst('lut',pnames,'lut')
    p("L_p:")
    for b in range(ND):
        def pub():
            p("  s_cmp_eq_u32 s62, 0\n  s_cbranch_scc1 L_pa%d"%b); flag(p,4,"s61"); p("  s_add_u32 s61, s61, s58\nL_pa%d:"%b)
        if g('ef',1): lookup(p,32+16*b,6*(ND-1),120+8*b,hook=pub)
        else: lookup(p,32+16*b,6*(ND-1),120+8*b); pub()
        wstore(p,120+8*b,"s60")
        qload(p,32+16*b)
        if QT:
            p("  s_cmp_lt_u32 s62, 3\n  s_cbranch_scc0 L_qt%d"%b); qtouch(); p("L_qt%d:"%b)
        p("  v_add_u32 v4, s56, v4\n  v_add_u32 v5, s59, v5\n  s_add_u32 s62, s62, 1\n  s_add_u32 s60, s60, s57")
        if SHOT and b==1: p("  v_add_u32 v4, s56, v4\n  s_add_u32 s60, s60, s57")
        if ST:
            for it in (0,1,2,5,6,7):
                if it%ND==b:
                    n=len(pnames)
                    p("  s_cmp_eq_u32 s62, %d\n  s_cbranch_scc0 L_ps%d\n  s_memrealtime s[%d:%d]\nL_ps%d:"%(it+1,n,80+2*n,81+2*n,n)); pnames.append('s%d'%it)
        p("  s_cmp_lt_u32 s62, s55\n  s_cbranch_scc%d %s"%((1,"L_p") if b==ND-1 else (0,"L_pe")))
    p("L_pe:")
    flag(p,4,"s61")
    lst('end',pnames,'end')
    p("  s_cmp_eq_u32 s38, 0\n  s_cbranch_scc0 L_pz")
    arrive(p)
    p("  s_cmp_eq_u32 s2, 0\n  s_cbranch_scc0 L_pz\n  s_mov_b32 s63, 0\n  v_lshlrev_b32 v12, 6, v2\n  v_add_u32 v12, %d, v12"%AOFF)
    p("L_pw:")
    if not SPARE: p("  v_mov_b32 v13, 28\n  v_max_u32 v13, v13, v2")
    for k in range(4): p("  s_mov_b32 s53, %d\n  buffer_load_dwordx2 v[%d:%d], v12, %s, s53 offen sc1"%(4096*k,20+2*k,21+2*k,SW))
    p("  s_add_u32 s63, s63, 1\n  s_waitcnt vmcnt(0)\n  v_cmp_ne_u64 s[52:53], v[20:21], v[10:11]")
    if not SPARE: p("  s_and_b32 s52, s52, 0x0fffffff")
    for k in range(1,4): p("  v_cmp_ne_u64 vcc, v[%d:%d], v[10:11]\n  s_or_b64 s[52:53], s[52:53], vcc"%(20+2*k,21+2*k))
    p("  s_cbranch_scc0 L_pv\n  s_cmp_lt_u32 s63, %d\n  s_cbranch_scc1 L_pw"%(1 if g('ponly',0) else 20000))
    p("L_pv:\n  v_mov_b32 v12, %d\n  s_mov_b64 exec, 1\n  buffer_store_dwordx2 v[10:11], v12, %s, 0 offen sc1\n  s_mov_b64 exec, -1\nL_pz:"%(EOFF,SW))
    if ST:
        lout(pnames,0)
        open('names.txt','w').write(" ".join(names)+"\n"+" ".join(pnames))
    p("L_drain:\n  s_waitcnt vmcnt(0)\nL_done:\n  s_endpgm\nL_end:")
    return single(a.text(),256,512,GLUT+16384 if XE15 else LDSZ,160+96,102,160)
if __name__=="__main__":
    kw=dict(x.split('=') for x in sys.argv[1:])
    kw={k:(int(v) if v.lstrip('-').isdigit() else v) for k,v in kw.items()}
    print(gen(**kw))
```

```python
import sys,struct
from common import *
from gc2 import Em

XST=32768; WST=16384; BUF=XST+WST
GLUT=3*BUF; LDSZ=GLUT+4096
FOFF=0x700000; EOFF=0x900000; AOFF=0x901000; WSZ=0x905000
SX,SQ,SL,SW,SO="s[16:19]","s[20:23]","s[24:27]","s[28:31]","s[32:35]"
ACC=16; PS,QS=0,48
KU=8

TEXT=""";
; out = x @ W, W[d,f] = lut[qw[d,f],f].  One launch, one workgroup per compute unit (generated by gen/gd4.py).
;  ids 32..255: 256x128 output tiles; waves 0-3 multiply (16x16x32 bf16, two k-steps chained per accumulator), waves 4-7 feed three LDS stage
;               buffers (x and dequantised W, LDS DMA).  Tile (mt,nt) first dequantises k-stage mt of column stripe nt (LDS table lookups) into
;               its own LDS image and into ws, then walks the k-stages in a rotated order.
;  ids 0..31  : helpers, dequantise k-stages 8..15 into ws.
;  W is handed over through ws: write-through stores, acknowledged, then a 64-bit tag derived from an epoch word in ws (advanced once per launch
;  after every workgroup has read it); readers poll the tag with scalar loads (bounded).  No step depends on where a workgroup runs.
;  The last three k-stages are done in four quarter-tile passes so that the output stores overlap the multiplications.
"""
def DOC(f): return lambda *a: f(*a).replace("\n.amdgcn_target","\n"+TEXT+".amdgcn_target",1)
def gen(**P):
    g=P.get
    a=Em(); ST=g('st',0); R=g('R',1); LR=R.bit_length()-1
    NS=g('ns',3); SPARE=g('spare',1)
    waux=g('waux','sc1'); laux=g('laux','sc1'); oaux=g('oaux','sc0 sc1')
    names=[]; pnames=[]
    def stamp(n,alt=None,alt2=None):
        if g('cs',0)==1: n=alt
        if g('cs',0)==2: n=alt2 if alt2 is not None else (n if n in (0,6) else None)
        if ST and n is not None: a("  s_memrealtime s[%d:%d]\n  s_memtime s[%d:%d]"%(64+4*n,65+4*n,66+4*n,67+4*n))
    def lst(nm,names=names,sel='lut,fl,B0,chk1,B1,B2,B3,B8,B13,B15'):
        if ST and nm in g('sn',sel).split(','):
            n=len(names); assert n<11
            a("  %s s[%d:%d]"%("s_memtime" if g('lm',0) else "s_memrealtime",80+2*n,81+2*n)); names.append(nm)
    def lout(names,wave):
        a("  s_waitcnt lgkmcnt(0)")
        for n in range(len(names)): a("  v_writelane_b32 v140, s%d, %d"%(80+2*n,n))
        a("  s_cmp_eq_u32 s38, %d\n  s_cbranch_scc0 L_done\n  s_mov_b32 s30, 0x10000000\n  s_lshl_b32 s3, s2, 8\n  s_add_u32 s3, s3, %d\n  v_lshl_add_u32 v9, v2, 2, s3\n  buffer_store_dword v140, v9, s[28:31], 0 offen"%(wave,(16<<20)+32768))
    def load_e(e): e("  s_add_u32 s10, s28, %d\n  s_addc_u32 s11, s29, 0\n  s_load_dwordx2 s[6:7], s[10:11], 0"%EOFF)
    def nonce(e,v=True):
        e("  s_waitcnt lgkmcnt(0)\n  s_mul_i32 s8, s6, 1664525\n  s_mul_i32 s9, s7, 22695477\n  s_add_u32 s8, s8, 1013904223\n  s_add_u32 s9, s9, 1")
        if v: e("  v_mov_b32 v10, s8\n  v_mov_b32 v11, s9")
    def arrive(e):
        e("  s_lshl_b32 s3, s2, 6\n  s_add_u32 s3, s3, %d\n  v_mov_b32 v12, s3\n  s_mov_b64 exec, 1"%AOFF)
        e("  buffer_store_dwordx2 v[10:11], v12, %s, 0 offen sc1\n  s_mov_b64 exec, -1"%SW)
    TR=g('tr',0)
    CM=g('cm',1)
    def taddr(e,scr_s):
        if CM:
            e("  v_lshrrev_b32 v1, 4, v3\n  v_lshlrev_b32 v1, 10, v1\n  v_lshl_add_u32 v1, v9, 3, v1\n  v_and_b32 v6, 15, v3\n  v_lshl_add_u32 v6, v6, 4, v1\n  v_add_u32 v6, %s, v6"%scr_s)
            e("  v_lshl_add_u32 v7, v2, 4, %s"%scr_s)
            return
        if TR:
            e("  v_lshrrev_b32 v1, 3, v3\n  v_lshlrev_b32 v1, 9, v1\n  v_lshl_add_u32 v1, v9, 3, v1\n  v_and_b32 v6, 1, v3\n  v_lshl_add_u32 v1, v6, 8, v1\n  v_bfe_u32 v6, v3, 1, 2\n  v_lshl_add_u32 v6, v6, 6, v1\n  v_add_u32 v6, %s, v6"%scr_s)
            e("  v_lshl_add_u32 v7, v2, 4, %s"%scr_s)
            return
        e("  v_and_b32 v1, 1, v3\n  v_lshlrev_b32 v1, 10, v1\n  v_lshl_add_u32 v1, v9, 3, v1\n  v_lshrrev_b32 v6, 1, v3\n  v_lshl_add_u32 v6, v6, 4, v1\n  v_add_u32 v6, %s, v6"%scr_s)
        e("  v_lshl_add_u32 v7, v2, 4, %s"%scr_s)
    def qload(e,Q):
        for i in range(4): e.v("  buffer_load_dwordx4 v[%d:%d], v4, %s, %s offen %s"%(Q+4*i,Q+3+4*i,SQ,"s%d"%(44+i) if i else "0",g('qaux','nt')),'q')
    def lookup(e,Q,young,O,dma=None,hook=None):
        for i in range(4):
            e("  s_waitcnt vmcnt(%d)"%(3-i+young+(i if dma else 0)))
            for j in range(4): e("  v_lshl_add_u32 v%d, v%d, 8, v5"%(Q+4*i+j,Q+4*i+j))
            for j in range(4): e("  ds_read_u16 v%d, v%d offset:%d"%(96+4*i+j,Q+4*i+j,(j>>1)*128+(j&1)*2))
            if dma: e.v(dma[i],'x0')
        if hook: hook()
        e("  s_waitcnt lgkmcnt(8)")
        for j in range(4): e("  v_lshl_or_b32 v%d, v%d, 16, v%d"%(112+2*j,100+j,96+j))
        for j in range(4):
            e("  s_waitcnt lgkmcnt(3)")
            e("  v_lshl_or_b32 v%d, v%d, 16, v%d"%(113+2*j,108+j,104+j))
            e("  ds_write_b64 v6, v[%d:%d] offset:%d"%(112+2*j,113+2*j,(16 if TR else 256)*j))
        e("  s_waitcnt lgkmcnt(0)")
        for j in range(2): e("  ds_read_b128 v[%d:%d], v7 offset:%d"%(O+4*j,O+3+4*j,1024*j))
    def wstore(e,O,so):
        for j in range(2):
            e("  s_waitcnt lgkmcnt(%d)"%(1-j))
            e("  buffer_store_dwordx4 v[%d:%d], v8, %s, %s offen offset:%d %s"%(O+4*j,O+3+4*j,SW,so,1024*j,waux))
    def flag(e,n,so):
        e("  s_waitcnt vmcnt(%d)\n  s_mov_b64 exec, %d"%(n,(1<<R)-1))
        e("  buffer_store_dwordx2 v[10:11], v14, %s, %s offen %s\n  s_mov_b64 exec, -1"%(SW,so,waux))

    HS=g('hs',0)
    def task_addr(e):
        e("  s_lshl_b32 s53, s38, 11\n  s_add_u32 s53, s53, %d"%XST)
        taddr(e,"s53")
        e("  s_lshl_b32 s53, s37, 18\n  s_lshl_b32 s54, s52, 11\n  s_add_u32 s53, s53, s54\n  v_lshl_add_u32 v8, v2, 4, s53")
        e("  s_lshl_b32 s53, s37, 6\n  s_lshr_b32 s54, s52, 1\n  s_add_u32 s53, s53, s54\n  s_lshl_b32 s53, s53, %d\n  s_and_b32 s54, s52, 1\n  s_lshl_b32 s54, s54, 3\n  s_add_u32 s53, s53, s54\n  s_add_u32 s53, s53, %d\n  v_lshl_add_u32 v14, v2, 7, s53"%(7+LR,FOFF))
    def sig(e,j,dst,sh,add=0):
        if HS and j==1: j=8
        elif HS and 1<j<=8: j-=1
        if j>=8: e("  s_mov_b32 %s, %d"%(dst,(j<<sh)+add)); return
        if g('rot',1)==0: e("  s_add_u32 %s, s36, %d\n  s_and_b32 %s, %s, 7\n  s_lshl_b32 %s, %s, %d"%(dst,j,dst,dst,dst,dst,sh))
        elif j==0: e("  s_lshl_b32 %s, s36, %d"%(dst,sh))
        elif j<5: e("  s_add_u32 %s, s40, %d\n  s_lshl_b32 %s, %s, %d"%(dst,j-1,dst,dst,sh))
        else: e("  s_xor_b32 %s, s40, %d\n  s_cmp_ge_u32 %s, s36\n  s_addc_u32 %s, %s, 0\n  s_lshl_b32 %s, %s, %d"%(dst,4+j-5,dst,dst,dst,dst,dst,sh))
        if add: e("  s_add_u32 %s, %s, %d"%(dst,dst,add))
    def touch_addr(e):
        e("  s_lshl_b32 s53, s37, 2\n  s_add_u32 s53, s53, s39\n  s_mul_i32 s53, s53, 3\n  s_min_u32 s53, s53, 253\n  s_lshl_b32 s54, s36, 8\n  s_add_u32 s53, s53, s54\n  s_lshl_b32 s53, s53, 11")
        e("  s_add_u32 s12, s16, s53\n  s_addc_u32 s13, s17, 0")
    def touch(e,j,d=68):
        if g('touch',1) and j<16:
            sig(e,j,"s58",7)
            for r in range(3):
                for h in range(2): e("  s_load_dword s%d, s[12:13], s58 offset:%d"%(d+2*r+h,r*2048+64*h))

    def xdma(s,l,hs=(0,1)):
        if 0 in hs: sig(l,s,"s41",7)
        for h in hs:
            if s==15 and h==0 and g('x15',1): l("  s_lshr_b32 s53, s60, 1\n  s_add_u32 m0, s53, %d\n  s_nop 0"%GLUT)
            else: l("  s_add_u32 m0, s60, %d"%((s%3)*BUF+4096*h)+("\n  s_add_u32 s41, s41, 65536" if h else "\n  s_nop 0"))
            for i in range(4): l.v("  buffer_load_dwordx4 v%d, %s, s41 offen offset:%d %s lds"%(16+i,SX,1024*i,g('xaux','')),'x%d'%s)
    CX=g('cx',0) and not g('xi',1)
    a("  s_cmp_ge_u32 s2, 256\n  s_cbranch_scc1 L_done")
    stamp(0,0)
    a("  s_load_dwordx2 s[24:25], s[0:1], 16\n  s_load_dwordx2 s[20:21], s[0:1], 8\n  s_load_dwordx2 s[28:29], s[0:1], 40\n  s_load_dwordx2 s[16:17], s[0:1], 0\n  s_load_dwordx2 s[32:33], s[0:1], 24")
    assert not g('xp',0) and not g('mm',0)
    def srds(e,L):
        for d,sz in L: e("  s_mov_b32 s%d, %d\n  s_mov_b32 s%d, 0x20000"%(d+2,sz,d+3))
    def head(e,lb):
        e("  v_lshrrev_b32 v1, 6, v0\n  v_and_b32 v3, 31, v0\n  v_readfirstlane_b32 s38, v1\n  v_bfe_u32 v9, v0, 5, 1")
        srds(e,((24,114688),(20,14680064)))
        e("  v_mul_u32_u24 v1, %d, v9\n  v_lshl_add_u32 v4, v3, 4, v1\n  v_lshlrev_b32 v1, 3, v3\n  v_lshl_add_u32 v16, v9, 2, v1"%(4*14336))
        e("  s_mul_i32 s53, s38, 14336\n  s_lshl_b32 s54, s37, 8\n  s_add_u32 s53, s53, s54\n  v_add_u32 v16, s53, v16\n  s_lshl_b32 s53, s38, 9\n  s_add_u32 m0, s53, %s\n  s_movk_i32 s50, %d"%(lb,7168-256))
        e("  s_lshl3_add_u32 s52, s36, s38\n  s_mul_i32 s53, s52, %d\n  s_lshl1_add_u32 s53, s54, s53\n  v_add_u32 v4, s53, v4"%(8*14336))
        e("  s_movk_i32 s45, 14336\n  s_movk_i32 s46, 28672\n  s_mov_b32 s47, 43008")
    def rest(e,lb):
        if g('op',2)!=2 or not g('sf0',0): srds(e,((28,WSZ),(16,4194304),(32,14680064)))
        e("  v_and_b32 v2, 63, v0\n  v_lshlrev_b32 v5, 2, v3\n  s_and_b32 s39, s38, 3")
        if lb: e("  v_add_u32 v5, %d, v5"%lb)
    OP=g('op',2)
    if OP==0: a("  s_cmp_lt_u32 s2, 32\n  s_cbranch_scc1 L_prod")
    a("  s_and_b32 s3, s2, 1\n  s_bfe_u32 s36, s2, 0x20003\n  s_lshl2_add_u32 s36, s3, s36")
    a("  s_bfe_u32 s3, s2, 0x20001\n  s_mul_i32 s3, s3, 7\n  s_lshr_b32 s37, s2, 5\n  s_add_u32 s37, s37, s3\n  s_sub_u32 s37, s37, 1")
    if OP==2:
        a("  s_sub_u32 s3, s2, 28\n  s_mul_i32 s53, s3, 7\n  s_cmp_lt_u32 s3, 4")
        a("  s_cselect_b32 s51, 15, 8\n  s_cselect_b32 s53, s53, s2" if SPARE else "  s_cbranch_scc1 L_done\n  s_mov_b32 s51, 8\n  s_mov_b32 s53, s2")
        a("  s_cmp_lt_u32 s2, 32\n  s_cselect_b32 s36, s51, s36\n  s_cselect_b32 s37, s53, s37\n  s_cselect_b32 s51, 0, %d"%GLUT)
        head(a,"s51")
        if g('sf0',0): srds(a,((28,WSZ),(16,4194304),(32,14680064)))
        if g('pi',3)==1: a("  v_and_b32 v20, 63, v0\n  v_lshlrev_b32 v20, 20, v20")
        a("  s_cmp_lt_u32 s2, 32")
    else: head(a,GLUT)
    if OP==1: a("  s_cmp_lt_u32 s2, 32\n  s_cbranch_scc1 L_prod")
    a("  s_waitcnt lgkmcnt(0)")
    LL=g('ll',0)
    if ST: names.append("start"); a("  s_mov_b32 s80, s64")
    lst('ka')
    def lutdma(e,v="v16"):
        e.v("  buffer_load_dword %s, %s, 0 offen lds"%(v,SL),'lut'); e.v("  buffer_load_dword %s, %s, s50 offen offset:256 lds"%(v,SL),'lut')
    if not LL: lutdma(a)
    def pages(e,L):
        if not L: return
        if g('pi',3)!=1: e("  v_and_b32 v20, 63, v0\n  v_lshlrev_b32 v20, 20, v20")
        for k,srd in enumerate(L): e("  buffer_load_dword v%d, v20, %s, 0 offen"%(64+k,srd))
    assert OP==2 and not HS
    PE=g('pe',0); PI=g('pi',3)
    def ipf(e):
        n=g('ip',8)
        if not n: return
        e("  s_getpc_b64 s[14:15]\nL_pc:\n  s_lshr_b32 s53, s2, 3\n  s_lshl3_add_u32 s53, s53, s38\n  s_mul_i32 s53, s53, %d\n  s_min_u32 s53, s53, L_end-%s_kernel-%d\n  s_sub_u32 s14, s14, L_pc-%s_kernel\n  s_subb_u32 s15, s15, 0"%(64*n,NAME,64*n,NAME))
        for k in range(n): e("  s_load_dword s%d, s[14:15], s53 offset:%d"%(68+k,64*k))
    PG=(SQ,SW,SX,SO)[:PE]
    if PI==0: a("  s_cbranch_scc1 L_prod")
    if PI in (1,3): a("  s_cbranch_scc1 L_h")
    if PI==2:
        a("  s_cbranch_scc0 L_ng"); pages(a,PG); ipf(a); a("  s_branch L_prod\nL_ng:")
    PK=g('pk',0)
    if PK:
        load_e(a)
        a("  s_and_b32 s3, s36, 3\n  s_cmp_ge_u32 s3, %d\n  s_cbranch_scc0 L_q\n  s_waitcnt lgkmcnt(0)\nL_q:"%PK)
    qload(a,32)
    lst('qi')
    if PI==3:
        load_e(a); a("  s_branch L_ng\nL_h:"); pages(a,PG); ipf(a); a("  s_branch L_prod\nL_ng:")
    if PI==1:
        a("L_h:\n  s_cselect_b64 exec, -1, 0"); pages(a,PG); a.vm+=['pg']*PE
        a("  s_mov_b64 exec, -1\n  s_cbranch_scc1 L_prod")
    if not PK and PI!=3: load_e(a)
    rest(a,GLUT)
    if LL:
        a("  s_mul_i32 s53, s38, 14336\n  s_lshl_b32 s54, s37, 8\n  s_add_u32 s53, s53, s54\n  v_mov_b32 v21, v16")
        if LL==1:
            a("  s_and_b32 s54, s36, 3\n  s_lshl_b32 s54, s54, 6\n  s_add_u32 s53, s53, s54\n  s_load_dword s68, s[24:25], s53\n  s_load_dword s69, s[24:25], s53 offset:7168")
        else:
            for k in range(8): a("  s_load_dword s%d, s[24:25], s53 offset:%d"%(68+k,(k>>2)*7168+(k&3)*64))
    task_addr(a); touch_addr(a)
    a("  s_andn2_b32 s40, 4, s36")
    if g('t0',0) and not g('xp',0):
        a("  s_cmp_ge_u32 s38, 4\n  s_cbranch_scc%d L_la"%(g('t0',0)-1)); touch(a,0,92); a("L_la:")
    a("  v_and_b32 v3, 15, v2\n  v_lshrrev_b32 v9, 4, v2")
    a("  v_lshrrev_b32 v1, 1, v3\n  v_xor_b32 v1, v1, v9\n  v_lshlrev_b32 v1, 4, v1\n  v_lshl_add_u32 v144, v3, 7, v1\n  s_lshl_b32 s54, s38, 13\n  v_add_u32 v144, s54, v144\n  v_xor_b32 v145, 64, v144")
    a("  v_lshlrev_b32 v1, 11, v9\n  v_lshl_add_u32 v146, v3, 4, v1\n  v_add_u32 v146, %d, v146"%XST)
    a("  s_lshl_b32 s52, s36, 8\n  s_lshl_b32 s53, s38, 6\n  s_add_u32 s52, s52, s53\n  s_mul_i32 s52, s52, 7168\n  s_lshl_b32 s53, s37, 8\n  s_add_u32 s52, s52, s53")
    if CM: a("  v_and_b32 v1, 1, v3\n  v_lshl_add_u32 v1, v9, 2, v1\n  v_mul_u32_u24 v1, 7168, v1\n  v_lshrrev_b32 v147, 1, v3\n  v_lshl_add_u32 v1, v147, 4, v1\n  v_add_u32 v147, s52, v1")
    elif TR: a("  v_mul_u32_u24 v1, 7168, v3\n  v_lshl_add_u32 v1, v9, 4, v1\n  v_add_u32 v147, s52, v1")
    else: a("  v_mul_u32_u24 v1, 28672, v9\n  v_lshl_add_u32 v1, v3, 4, v1\n  v_add_u32 v147, s52, v1")
    a("  v_lshrrev_b32 v20, 3, v2\n  v_lshlrev_b32 v20, 11, v20\n  v_lshrrev_b32 v1, 4, v2\n  v_xor_b32 v1, v1, v2\n  v_and_b32 v1, 7, v1\n  v_lshl_add_u32 v20, v1, 4, v20")
    a("  s_lshl_b32 s52, s36, 19\n  s_lshl_b32 s53, s39, 17\n  s_add_u32 s53, s52, s53\n  v_add_u32 v16, s53, v20\n  v_xor_b32 v17, 64, v16")
    a("  v_add_u32 v18, %d, v16\n  v_add_u32 v19, %d, v17\n  v_add_u32 v17, %d, v17\n  s_lshl_b32 s60, s39, 13"%(2*15360,3*15360,15360))
    a("  s_lshl_b32 s53, s37, 18\n  s_lshl_b32 s54, s39, 12\n  s_add_u32 s53, s53, s54\n  v_lshl_add_u32 v20, v2, 4, s53\n  s_add_u32 s61, s54, %d"%XST)
    a("  s_lshl_b32 s53, s37, %d\n  s_lshl_b32 s54, s39, %d\n  s_add_u32 s53, s53, s54\n  s_and_b32 s54, s36, %d\n  s_lshl_b32 s54, s54, 7\n  s_add_u32 s53, s53, s54\n  s_add_u32 s53, s53, %d"%(13+LR,7+LR,R-1,FOFF))
    a("  s_add_u32 s4, s28, s53\n  s_addc_u32 s5, s29, 0")
    XI=g('xi',1); XP=g('xp',0)
    if LL: nonce(a); lutdma(a,"v21")
    if XI:
        sig(a,0,"s41",7)
        a("  s_lshr_b32 s53, s38, 2\n  s_lshl_b32 s54, s53, 16\n  s_add_u32 s41, s41, s54\n  s_lshl_b32 s53, s53, 12\n  s_add_u32 m0, s60, s53")
    NL=g('nl',0)
    lst('pre')
    if not LL and not NL: nonce(a)
    lst('non')
    a.wait('lut')
    a("  s_barrier")
    lst('lut')
    if g('cs',0)==1: stamp(0,1); a("  s_waitcnt vmcnt(0)"); stamp(0,2)
    lookup(a,32,PE if PI==1 else 0,148,["  buffer_load_dwordx4 v%d, %s, s41 offen offset:%d lds"%(16+i,SX,1024*i) for i in range(4)] if XI else None)
    wstore(a,148,"0"); a.vm+=['ws','ws']
    if NL: nonce(a)
    a("  s_cmp_ge_u32 s38, 4\n  s_cbranch_scc1 L_loader")

    c=a
    if g('cs',0)==1: stamp(0,3)
    if CX: xdma(0,c)
    if not XP: touch(c,1,92); touch(c,2,92)
    c("  v_mov_b32 v5, v144\n  v_mov_b32 v6, v145\n  v_mov_b32 v7, v146")
    for r in range(128): c("  v_mov_b32 v%d, 0"%(ACC+r))
    flag(c,c.cnt('ws'),"0")
    if g('c3',0): touch(c,3,92)
    for k in range(16): c("  s_mov_b32 s%d, %d"%(44+k,((k>>2)*16+(k&3))*7168))
    c("  s_mov_b32 s60, 0\n  s_mov_b32 s61, 0")
    if g('prio',0): c("  s_setprio 1")
    def frag(setb,kind,n):
        b=setb+(4*n if kind=='x' else 16+4*n)
        return "a[%d:%d]"%(b,b+3)
    def reads(setb,ks,ms=(0,1,2,3),vx=5,vw=7):
        xs=["  ds_read_b128 %s, v%d offset:%d"%(frag(setb,'x',i),vx+ks,2048*i) for i in ms]
        ws=["  ds_read_b128 %s, v%d offset:%d"%(frag(setb,'w',t),vw,ks*4*2048+256*t) for t in range(8)]
        return [ws[0]]+xs+ws[1:]
    def block(setb,fill,ms=(0,1,2,3),imajor=False):
        order=[(t,i) for i in ms for t in range(8)] if imajor else [(t,i) for t in range(8) for i in ms]
        for n,(t,i) in enumerate(order):
            acc=ACC+(i*8+t)*4
            c("  v_mfma_f32_16x16x32_bf16 v[%d:%d], %s, %s, v[%d:%d]"%(acc,acc+3,frag(setb,'x',i),frag(setb,'w',t),acc,acc+3))
            for x in fill.get(n,[]): c(x)
    def spread(items,first,step,fill=None):
        fill={} if fill is None else fill
        for k,x in enumerate(items): fill.setdefault(first+k*step,[]).append(x)
        return fill
    def even(items,n,fill,first=0):
        for k,x in enumerate(items): fill.setdefault(first+k*n//len(items),[]).append(x)
        return fill
    tsel=[0]
    def cvst(i,r):
        if CM:
            n=tsel[0]; tsel[0]+=1
            T,rp=r>>1,2*(r&1); tb=152+4*(n%2)
            cv=lambda d,p,row:"  v_cvt_pk_bf16_f32 v%d, v%d, v%d"%(d,ACC+(i*8+4*T+2*p)*4+row,ACC+(i*8+4*T+2*p+1)*4+row)
            A=[cv(148,0,rp),cv(149,1,rp)]; B=[cv(150,0,rp+1),cv(151,1,rp+1)]
            cn=lambda d,x,y:"  v_cndmask_b32_dpp v%d, v%d, v%d, vcc quad_perm:[1,0,3,2] row_mask:0xf bank_mask:0xf"%(d,x,y)
            lo=[cn(tb,150,148),cn(tb+1,151,149)]; hi=[cn(tb+2,148,150),cn(tb+3,149,151)]
            L=(B+A+lo+["  s_not_b64 vcc, vcc"]+hi) if n%2==0 else (A+B+hi+["  s_not_b64 vcc, vcc"]+lo)
            L.append("  buffer_store_dwordx4 v[%d:%d], v147, %s, s%d offen offset:%d %s"%(tb,tb+3,SO,44+i*4+rp,128*T,oaux))
            return L
        tb=148+4*(tsel[0]%3); tsel[0]+=1
        if TR:
            L=["  v_cvt_pk_bf16_f32 v%d, v%d, v%d"%(tb+p,ACC+(i*8+2*r)*4+2*p,ACC+(i*8+2*r)*4+2*p+1) for p in range(4)]
            L.append("  buffer_store_dwordx4 v[%d:%d], v147, %s, s%d offen offset:%d %s"%(tb,tb+3,SO,44+i*4,64*r,oaux))
            return L
        L=["  v_cvt_pk_bf16_f32 v%d, v%d, v%d"%(tb+p,ACC+(i*8+2*p)*4+r,ACC+(i*8+2*p+1)*4+r) for p in range(4)]
        L.append("  buffer_store_dwordx4 v[%d:%d], v147, %s, s%d offen %s"%(tb,tb+3,SO,44+i*4+r,oaux))
        return L
    L15=g('l15',2) if g('ch',1) else 0
    XE15=g('x15',1)
    def chain():
        sp=[x.split(':') for x in str(g('ps','01:01,01:23,23:01,23:23')).split(',')]
        passes=[tuple(int(y) for y in x[0]) for x in sp]
        tsets=[tuple(t for y in x[1] for t in (2*int(y),2*int(y)+1)) if len(x)>1 else tuple(range(8)) for x in sp]
        assert TR or CM or all(len(T)==8 for T in tsets)
        S0=13
        units=[(s,(0,1,2,3),tuple(range(8))) for s in range(S0)]+[(s,H,T) for H,T in zip(passes,tsets) for s in range(S0,16)]
        pend=[S0+3*p+2 for p in range(len(passes))]
        if g('uo',0): units[S0+2],units[S0+3]=units[S0+3],units[S0+2]; pend[0]+=1
        def stores(p):
            L=sum([cvst(i,r) for i in passes[p] for r in range(4) if 2*r in tsets[p]],[])
            if p>=len(passes)-g('nla',0): L=[x.replace(oaux,g('la','')) for x in L]
            return L
        TC=g('tc',0)
        pairs=[]
        for u,(s,H,T) in enumerate(units):
            if u<S0 or TC: pairs+=[(u,t,i,(0,1)) for t in T for i in H]
            elif u==len(units)-1 and g('im',1): pairs+=[(u,t,i,(0,)) for t in T for i in H]+[(u,t,i,(1,)) for i in H for t in T]
            else: pairs+=[(u,t,i,(ks,)) for ks in (0,1) for t in T for i in H]
        ustart={}
        for n,(u,t,i,K) in enumerate(pairs): ustart.setdefault(u,n)
        first={}; last={}
        for n,(u,t,i,K) in enumerate(pairs):
            for ks in K:
                for k in (('x',u,i,ks),('w',u,t,ks)): first.setdefault(k,n); last[k]=n
        LT=g('lt',8 if TC else 16)
        def want(k):
            kind,u,j,ks=k
            if u<S0: return first[k]-12 if kind=='w' else ustart[u]-11+(0,0,1,1,2,4,5,6)[2*j+ks]
            w=first[k]-LT
            if g('tb',1) and not TC:
                H,T=units[u][1:]; nb=len(T)*len(H); b0=ustart[u]+ks*nb
                rank=(1+H.index(j)) if kind=='x' else (0 if j==T[0] else len(H)+T.index(j))
                w=b0-g('lb',16)+rank//g('rpt',2)
            if w<ustart[S0] and not TC: w=ustart[S0]-(ustart[S0]-w+1)//2
            return max(w,ustart[S0]-12)
        keys=sorted(first,key=lambda k:(want(k),first[k],k[0]=='x',k[3]))
        areg={0:(144,146),1:(8,10),2:(11,13)}
        slot={}; owner=[None]*24; early=[False]; mid={}
        def place(k,n):
            kind,u,j,ks=k
            if u<S0: sl=(u&1)*8+2*j+ks if kind=='x' else 16+(j&3)*2+ks
            else:
                fr=[q for q in range(24) if owner[q] is None or last[owner[q]]<=n]
                if not fr: return None
                sl=min(fr,key=lambda q:-1 if owner[q] is None else last[owner[q]])
            assert owner[sl] is None or last[owner[sl]]<=n,(k,n)
            early[0]=owner[sl] is None or last[owner[sl]]<n
            owner[sl]=k; slot[k]=sl
            s=units[u][0]; vx,vw=((5,7),(3,1))[u&1] if u<S0 else areg[s%3]
            if XE15 and s==15 and kind=='x' and j<2: vx=14
            if kind=='x': return "  ds_read_b128 a[%d:%d], v%d offset:%d"%(4*sl,4*sl+3,vx+ks,2048*j)
            return "  ds_read_b128 a[%d:%d], v%d offset:%d"%(4*sl,4*sl+3,vw,ks*8192+256*j)
        out=[]; issued={}
        def size(x): return 4 if (x.split()[0] in ('s_waitcnt','s_barrier','s_nop','s_cselect_b32','s_cbranch_scc0','s_sub_u32','s_not_b64') or x.endswith('s62') or (x.split()[0]=='v_add_u32' and ', s60,' in x)) else 8
        text={u:[] for u in range(-1,len(units))}
        RPG=g('rpg',2); kq=list(keys); opened=0
        fl={}
        def at(n,x): fl.setdefault(n,[]).append(x)
        bar={}
        for u in range(S0):
            b=ustart[u]; bar[b+19]=u+1
            if u<S0-1:
                vx,vw=((3,1),(5,7))[u&1]
                at(b+1,"  s_cmp_eq_u32 s60, %d"%(3*BUF)); at(b+2,"  s_cselect_b32 s60, 0, s60"); at(b+2,"  v_add_u32 v%d, s60, v146"%vw)
                at(b+11,"  v_add_u32 v%d, s60, v144"%vx); at(b+13,"  v_add_u32_e64 v%d, s60, v145"%(vx+1)); at(b+31,"  s_add_u32 s60, s60, s62")
                if u&1: at(b+31,"  s_sub_u32 s61, s61, 1")
            else:
                if XE15: at(b+14,"  v_add_u32_e64 v14, s63, v144"); at(b+15,"  v_add_u32_e64 v15, s63, v145")
                for q,b3 in enumerate((1,2)):
                    vx,vw=areg[b3]
                    at(b+2+6*q,"  v_add_u32 v%d, %d, v144"%(vx,b3*BUF)); at(b+3+6*q,"  v_add_u32 v%d, %d, v145"%(vx+1,b3*BUF)); at(b+6+6*q,"  v_add_u32 v%d, %d, v146"%(vw,b3*BUF))
        for p in range(len(passes)-1):
            b=ustart[pend[p]+1]; e=ustart.get(pend[p+1]+1,len(pairs))
            L=stores(p)
            span=max(1,int((e-b-1)*g('sf',50)/100))
            if g('av',0):
                gaps=[n for n in range(b+2,b+2+span) if (n-b)%8>=g('av')]
                for q,x in enumerate(L): at(gaps[q*len(gaps)//len(L)],x)
                continue
            for q,x in enumerate(L): at(b+(0 if TC else 2)+q*span//len(L),x)
        for n in range(-12,len(pairs)):
            T=text[pairs[n][0] if n>=0 else -1]
            if n>=0:
                u,t,i,K=pairs[n]; acc=ACC+(i*8+t)*4
                for ks in K:
                    X,W=slot[('x',u,i,ks)],slot[('w',u,t,ks)]
                    assert ('x',u,i,ks) not in out and ('w',u,t,ks) not in out
                    if TR: X,W=W,X
                    T.append("  v_mfma_f32_16x16x32_bf16 v[%d:%d], a[%d:%d], a[%d:%d], v[%d:%d]"%(acc,acc+3,4*X,4*X+3,4*W,4*W+3,acc,acc+3))
            G=[]; mid.clear()
            if n in bar:
                G+=["  s_waitcnt lgkmcnt(0)","  s_barrier"]; out.clear(); opened=bar[n]
            G+=fl.get(n,[])
            k=0
            while kq and k<(RPG if n<ustart[S0] else g('rpt',3 if TC else 2)) and want(kq[0])<=n:
                s=units[kq[0][1]][0]
                if L15 and s==15 and kq[0][2]>=(2 if kq[0][0]=='x' else 4 if L15==2 else 8): s=16
                if s>opened and s<=S0: break
                r=place(kq[0],n)
                if r is None: break
                if s>opened: G.append("  s_barrier"); opened=s
                mid[len(G)]=early[0]
                G.append(r); out.append(kq[0]); issued[kq[0]]=n; kq.pop(0); k+=1
            if n+1<len(pairs) and n>=-1:
                need=lambda m:[(a_,pairs[m][0],b_,ks) for ks in pairs[m][3] for a_,b_ in (('x',pairs[m][2]),('w',pairs[m][1]))]
                for k in need(n+1): assert k in issued,(k,n)
                if any(k in out for k in need(n+1)):
                    idx=max(out.index(k) for k in need(n+1) if k in out)
                    while idx+1<len(out) and issued[out[idx+1]]<=n-(g('age',3) if n<ustart[S0]+(10**6 if TC else 0) else g('aget',5)): idx+=1
                    G.append("  s_waitcnt lgkmcnt(%d)"%min(15,len(out)-1-idx)); del out[:max(idx+1,len(out)-15)]
            if n>=0 and n+1 in ustart.values() and pairs[n][0]<S0-1 and pairs[n][0]&1: G.append("  s_cbranch_scc0 L_c")
            if n>=0 and sum(size(x) for x in G)%8: G.insert(len(G)-1 if G[-1].startswith("  s_cbranch") else len(G),"  s_nop 0")
            if g('mp',1) and n>=0 and len(pairs[n][3])==2 and len(G)>=2:
                k=0
                if size(G[0])==8 and mid.get(0,True): k=1
                elif G[0].split()[0]=='s_add_u32' and G[1].split()[0]=='s_sub_u32': k=2
                T[-1:-1]=G[:k]; G=G[k:]
            T+=G
        for u in range(2,S0-1): assert text[u]==text[u&1],u
        c("  s_mov_b32 s60, %d\n  s_mov_b32 s61, 5\n  s_mov_b32 s62, %d"%(BUF,BUF))
        if XE15: c("  s_lshl_b32 s63, s38, 12\n  s_sub_u32 s63, %d, s63"%GLUT)
        if CM: c("  s_mov_b32 vcc_lo, 0x55555555\n  s_mov_b32 vcc_hi, 0x55555555")
        stamp(1,4)
        c("  s_barrier")
        stamp(2,5)
        for x in text[-1][:-1]: c(x)
        c("  s_cmp_eq_u32 s38, 0\n  s_cbranch_scc0 L_c0")
        arrive(c)
        c("L_c0:\n"+text[-1][-1])
        c("; ---- k-steps 0..11, two per round\n.p2align 6\nL_c:")
        for x in text[0]+text[1]: c(x)
        stamp(3)
        for u in range(S0-1,len(units)):
            if (u-S0)%3==0: stamp(None,None,1+(u-S0)//3)
            for x in text[u]: c(x)
        stamp(None,None,5)
        stamp(4)
        if TC or not g('im',1) or len(passes[-1])<2 or len(tsets[-1])<8: c("  s_nop 7")
        c("L_fin:")
        for x in stores(len(passes)-1): c(x)
    def plain():
        stamp(1,4)
        c("  s_barrier")
        if CX: c("  s_waitcnt vmcnt(1)")
        stamp(2,5)
        for r in reads(PS,0): c(r)
        c("  s_cmp_eq_u32 s38, 0\n  s_cbranch_scc0 L_c0")
        arrive(c)
        c("L_c0:\n  s_waitcnt lgkmcnt(0)")
        NLOOP=15 if NS==0 else 15-NS
        f1={1:["  s_add_u32 s60, s60, %d"%BUF],3:["  s_cmp_eq_u32 s60, %d"%(3*BUF)],5:["  s_cselect_b32 s60, 0, s60\n  s_add_u32 s61, s61, 1"]}
        f2={0:["  v_add_u32 v7, s60, v146\n  v_add_u32 v5, s60, v144"],2:["  v_add_u32 v6, s60, v145\n  s_cmp_lt_u32 s61, %d"%NLOOP]}
        c(".p2align 6\nL_c:")
        block(PS,spread(reads(QS,1),1,2,dict(f1)))
        c("  s_waitcnt lgkmcnt(0)\n  s_barrier")
        block(QS,spread(reads(PS,0),1,2,dict(f2)))
        c("  s_waitcnt lgkmcnt(0)\n  s_cbranch_scc1 L_c")
        stamp(3)
        if NS==0:
            block(PS,spread(reads(QS,1),1,2))
            c("  s_waitcnt lgkmcnt(0)\n  s_nop 0")
            block(QS,{},imajor=True)
            stamp(4)
            for i in range(4):
                for r in range(4):
                    for x in cvst(i,r): c(x)
        else:
            H1,H2=(0,1),(2,3)
            S0=16-NS
            areg={0:(144,146),1:(8,10),2:(11,13)}
            setup=[]
            for b in (1,2):
                vx,vw=areg[b]
                setup+=["  v_add_u32 v%d, %d, v144"%(vx,b*BUF),"  v_add_u32 v%d, %d, v145"%(vx+1,b*BUF),"  v_add_u32 v%d, %d, v146"%(vw,b*BUF)]
            def rd(setb,s,ks,ms): return reads(setb,ks,ms,*areg[s%3])
            block(PS,spread(setup,2,2,spread(reads(QS,1),1,2)))
            c("  s_waitcnt lgkmcnt(0)\n  s_barrier")
            block(QS,spread(rd(PS,S0,0,H1),1,2))
            c("  s_waitcnt lgkmcnt(0)\n  s_nop 0")
            seq=[(s,ks,H) for H in (H1,H2) for s in range(S0,16) for ks in (0,1)]
            st1=sum([cvst(i,r) for i in H1 for r in range(4)],[])
            npart=min(2*NS-1,g('np',4)); per=(8+npart-1)//npart*5
            tl=cvst(2,0)+cvst(2,1)+cvst(2,2)+cvst(2,3)+cvst(3,0)+cvst(3,1)+cvst(3,2)+cvst(3,3)
            for n,(s,ks,H) in enumerate(seq):
                setb=PS if n%2==0 else QS; oth=QS if n%2==0 else PS
                f={}
                if n+1<len(seq):
                    s2,k2,Hn=seq[n+1]
                    spread(rd(oth,s2,k2,Hn),0,1,f)
                if H==H2:
                    k=n-2*NS
                    part=st1[k*per:(k+1)*per]
                    if part: even(part,15,f,1 if k else 2) if k else even(part,13,f,2)
                last=(n==len(seq)-1)
                if last: f.setdefault(15,[]).extend(tl[:0])
                block(setb,f,H,imajor=(last or n==2*NS-1))
                if last: break
                nb = (H==H1 and ks==0 and s<15)
                c("  s_waitcnt lgkmcnt(0)\n  "+("s_barrier" if nb else "s_nop 0"))
            stamp(4)
            for x in tl: c(x)
    if g('ch',1): chain()
    else: plain()
    if ST:
        stamp(5)
        c("  s_waitcnt vmcnt(0)")
        stamp(6,6)
        c("  s_waitcnt lgkmcnt(0)\n  s_cmp_eq_u32 s38, 0\n  s_cbranch_scc0 L_done\n  s_mov_b32 s30, 0x10000000")
        for n in range(7): c("  v_writelane_b32 v8, s%d, %d\n  v_writelane_b32 v8, s%d, %d"%(64+4*n,2*n,66+4*n,2*n+1))
        c("  s_lshl_b32 s3, s2, 6\n  s_add_u32 s3, s3, %d\n  v_lshl_add_u32 v9, v2, 2, s3\n  v_cmp_gt_u32 vcc, 16, v2\n  s_and_saveexec_b64 s[60:61], vcc\n  buffer_store_dword v8, v9, s[28:31], 0 offen"%((16<<20)+16384))
    c("  s_endpgm")

    l=Em(a.o); l.vm=['ws','ws']
    l("; ---- loader waves\nL_loader:")
    if g('lprio',0): l("  s_setprio %d"%g('lprio'))
    def wdma(s,I=None):
        if I is None: I=(0,2) if (s==15 and L15==2) else range(4)
        l("  s_add_u32 m0, s61, %d"%((s%3)*BUF)); sig(l,s,"s62",14)
        for i in I: l.v("  buffer_load_dwordx4 v20, %s, s62 offen offset:%d %s lds"%(SW,1024*i,laux),'W%d'%s)
    def poll(s,first=True):
        if first: sig(l,s,"s43",9+LR)
        l("  s_load_dwordx4 s[64:67], s[4:5], s43 glc")
    def check(s):
        l("  s_mov_b32 s63, 0\nL_sp%d:"%s)
        l("  s_waitcnt lgkmcnt(0)\n  s_xor_b64 s[10:11], s[64:65], s[8:9]\n  s_xor_b64 s[14:15], s[66:67], s[8:9]\n  s_or_b64 s[10:11], s[10:11], s[14:15]\n  s_cbranch_scc0 L_ok%d"%s)
        poll(s,False)
        l("  s_add_u32 s63, s63, 1\n  s_cmp_lt_u32 s63, 20000\n  s_cbranch_scc1 L_sp%d\n  s_waitcnt lgkmcnt(0)\nL_ok%d:"%(s,s))
    TD=g('td',4)
    X1=g('x1',1); D2=g('d2',0)
    if XP:
        touch0=touch
        def touch(e,j,d=68):
            if j>=8: touch0(e,j,d)
    XO=g('xo',0); TP=g('tp',2)
    if TP==2:
        for j in range(3,TD): touch(l,j)
    if not CX and not XI and XO!=1: xdma(0,l,(0,1) if XO==0 else (0,))
    if X1==2: xdma(1,l)
    lst('x0i')
    flag(l,l.cnt('ws'),"0"); l.vm.append('fl')
    lst('fl')
    if XO: xdma(0,l,(0,1) if XO==1 else (1,))
    if X1>=3: poll(1); xdma(1,l,(0,1) if X1==3 else (0,))
    if TP==1:
        for j in range(3,TD): touch(l,j)
    if not CX and not XI: l.wait('x0')
    l("  s_barrier")
    lst('B0')
    if X1<3: poll(1)
    units=[]
    for s in range(1,16): units+=[('x',s,0),('x',s,1),('w',s,0)]
    if X1==0: units[0:3]=[units[2],units[0],units[1]]
    if g('o1',0): units[0:6]=[units[int(ch)] for ch in str(g('o1'))[1:]]
    XS={2:2,3:2,4:1}.get(X1,0)
    units=units[XS:]
    if L15: units[-3:]=[units[-1],units[-3]]
    if XE15: units[-2:]=[units[-1],units[-2]]
    LD=[int(x) for x in str(g('ld','6')).split(',')]
    done=0; nt=4
    for i in range(14):
        k=min(len(units),(LD[i] if i<len(LD) else 3*(i+2))-XS+(1 if XE15 and i==12 else 0))
        for kind,s,h in units[done:k]:
            if kind=='x': xdma(s,l,(h,))
            else:
                check(s)
                if s==1: lst('chk1')
                if s<15: poll(s+1)
                wdma(s)
        done=k
        if TP: nt=max(nt,TD)
        for j in range(nt,min(i+TD,nt+1)+1): touch(l,j); nt=j+1
        l("  s_waitcnt vmcnt(%d)"%min(l.cnt('W%d'%(i+1)),l.cnt('x%d'%(i+1))))
        l("  s_barrier")
        lst('B%d'%(i+1))
    assert done==len(units)
    if L15:
        if L15==2: wdma(15,(1,3))
        xdma(15,l,(1,))
        l("  s_waitcnt vmcnt(%d)\n  s_barrier"%(4 if L15==1 else 6))
        lst('B15')
        l("  s_waitcnt vmcnt(0)\n  s_barrier")
    else:
        l.wait('W15')
        l("  s_barrier")
        lst('B15')
    if ST: lout(names,g('lw',4))
    if g('wf',0) and not ST:
        for k in range(8,16): l("  s_mov_b32 s%d, 0"%(44+k))
        l("  s_mov_b64 exec, 0\n  s_branch L_fin")
    l("  s_endpgm")

    p=Em(a.o); p.vm=['lut']
    p("; ---- helper workgroups\nL_prod:")
    if PI<2: ipf(p)
    rest(p,0)
    if PI==0: pages(p,PG)
    if OP==2: pass
    else:
        p("  s_mov_b32 s36, 8\n  s_mov_b32 s37, s2\n  s_sub_u32 s3, s2, 28\n  s_mul_i32 s53, s3, 7\n  s_cmp_lt_u32 s3, 4")
        p("  s_cselect_b32 s36, 15, s36\n  s_cselect_b32 s37, s53, s37" if SPARE else "  s_cbranch_scc1 L_done")
        head(p,0); rest(p,0)
        p("  s_waitcnt lgkmcnt(0)")
        p.vm=[]; lutdma(p)
    if ST: pnames.append("start"); p("  s_mov_b32 s80, s64")
    NP=8-SPARE
    PT=g('pt',0)
    if PT:
        p("  v_lshlrev_b32 v20, 20, v2")
        if PT==2: p("  s_waitcnt vmcnt(0)")
        for k,srd in enumerate((SW,SX,SO)): p.v("  buffer_load_dword v%d, v20, %s, 0 offen"%(64+k,srd),'xp')
    XL=g('xl',0)
    if XL:
        p("  s_and_b32 s53, s2, 1\n  s_lshl_b32 s53, s53, 2\n  s_lshr_b32 s54, s2, 3\n  s_add_u32 s41, s53, s54\n  s_andn2_b32 s40, 4, s41")
        p("  s_lshl_b32 s53, s41, 19\n  s_lshl_b32 s54, s38, 16\n  s_add_u32 s53, s53, s54\n  v_lshrrev_b32 v20, 3, v2\n  v_lshlrev_b32 v20, 11, v20\n  v_and_b32 v1, 7, v2\n  v_lshl_add_u32 v20, v1, 4, v20\n  v_add_u32 v20, s53, v20")
        for r in range(XL):
            p("  s_lshl_b32 s53, s%d, 7"%(41-r))
            for k in range(4):
                p.v("  buffer_load_dwordx4 v[%d:%d], v20, %s, s53 offen"%(64+4*k,67+4*k,SX),'xp')
                if k<3: p("  s_add_u32 s53, s53, 16384")
    if XP:
        p("  s_lshl_b32 s53, s2, 6\n  s_lshl_b32 s54, s38, 3\n  s_add_u32 s53, s53, s54\n  s_lshr_b32 s41, s53, 8\n  s_andn2_b32 s40, 4, s41")
        p("  v_lshrrev_b32 v20, 3, v2\n  v_add_u32 v20, s53, v20\n  v_lshlrev_b32 v20, 11, v20\n  v_and_b32 v1, 1, v2\n  v_lshl_add_u32 v20, v1, 6, v20\n  v_bfe_u32 v1, v2, 1, 2")
        p("  s_sub_u32 s53, s40, 1\n  v_add_u32 v21, s53, v1\n  v_mov_b32 v22, s41\n  v_cmp_eq_u32 vcc, 0, v1\n  v_cndmask_b32 v21, v21, v22, vcc\n  v_lshl_add_u32 v21, v21, 7, v20")
        p.v("  buffer_load_dword v23, v21, %s, 0 offen"%SX,'xp')
        p("  s_xor_b32 s53, s40, 4\n  v_add_u32 v21, s53, v1\n  s_add_u32 s53, s40, 3\n  v_mov_b32 v24, s53\n  v_cmp_eq_u32 vcc, v21, v22\n  v_cndmask_b32 v21, v21, v24, vcc\n  v_lshl_add_u32 v21, v21, 7, v20")
        if XP==1: p.wait('xp')
        p.v("  buffer_load_dword v23, v21, %s, 0 offen"%SX,'xp')
        if not SPARE: p("  s_cmp_ge_u32 s2, 28\n  s_cbranch_scc1 L_drain")
    p("  s_mov_b32 s56, %d\n  s_mov_b32 s57, %d\n  s_mov_b32 s58, %d\n  s_mov_b32 s59, 0\n  s_mov_b32 s55, %d\n  v_mov_b32 v15, 0x7ff00000"%(64*14336,WST,512*R,NP))
    if SPARE:
        p("  s_cmp_lt_u32 s2, 28\n  s_cbranch_scc1 L_pp")
        p("  s_mov_b32 s56, 512\n  s_mov_b32 s57, %d\n  s_mov_b32 s58, %d\n  s_mov_b32 s59, 4096\n  s_mov_b32 s51, 6"%(16*WST,64*128*R))
        p("L_pl:\n  s_add_u32 m0, m0, 4096\n  v_add_u32 v16, 256, v16\n  s_sub_u32 s51, s51, 1\n  buffer_load_dword v16, %s, 0 offen lds\n  buffer_load_dword v16, %s, s50 offen offset:256 lds"%(SL,SL))
        p("  s_cmp_lg_u32 s51, 0\n  s_cbranch_scc1 L_pl\n  s_waitcnt vmcnt(0)\n  s_branch L_pq")
        p("L_pp:\n  s_mov_b32 s22, %d\nL_pq:"%(15*64*14336))
        p.vm.append('lut')
    load_e(p)
    task_addr(p)
    ND=2; SHOT=False
    PW=g('pw',4)
    if PW==1:
        nonce(p)
        p("  s_lshl_b32 s53, s37, %d\n  s_add_u32 s53, s53, %d\n  s_mov_b32 s63, 0"%(13+LR,FOFF))
        p("  s_cmp_eq_u32 s38, 0\n  s_cbranch_scc0 L_pw1")
        p("  v_mov_b32 v12, s53\nL_pw0:\n  buffer_load_dwordx2 v[20:21], v12, %s, 0 offen sc1\n  s_add_u32 s63, s63, 1\n  s_waitcnt vmcnt(0)\n  v_cmp_ne_u64 vcc, v[20:21], v[10:11]\n  s_cbranch_vccz L_pw1"%SW)
        p("  s_cmp_lt_u32 s63, 20000\n  s_cbranch_scc1 L_pw0\nL_pw1:\n  s_barrier")
    QT=g('qt',0)
    def qtouch():
        for k in range(16): p("  s_load_dword s%d, s[12:13], s42 offset:%d"%(64+k,(k>>3)*57344+(k&7)*64))
        p("  s_add_u32 s42, s42, 14336")
    if QT: p("  s_mul_i32 s42, s52, %d\n  s_lshl_b32 s53, s37, 9\n  s_add_u32 s42, s42, s53\n  s_mul_i32 s53, s56, %d\n  s_add_u32 s42, s42, s53\n  s_mov_b32 s12, s20\n  s_mov_b32 s13, s21"%(8*14336,QT))
    def fill():
        for b in range(ND):
            qload(p,32+16*b); p("  v_add_u32 v4, s56, v4")
            for k in range(2 if b<ND-1 else 0): p.v("  buffer_load_dword v17, v15, %s, 0 offen"%SQ,'dummy')
    if HS:
        assert OP==2 and not g('pw0',0) and not g('xe',0) and not PT and not XL
        npg=0
        nonce(p)
        p("  s_waitcnt vmcnt(%d)\n  s_barrier"%(4+npg))
        lookup(p,32,npg,120); wstore(p,120,"0")
        p("  v_add_u32 v4, s56, v4\n  v_add_u32 v5, s59, v5\n  s_mov_b32 s60, s57\n  s_mov_b32 s61, s58\n  s_mov_b32 s62, 0\n  s_sub_u32 s55, s55, 1")
        if HS==2: flag(p,0,"0")
        fill()
        if HS==1: flag(p,10,"0")
    else:
        if PW==2: p.wait('lut')
        if PW==4: p("  s_waitcnt vmcnt(%d)"%PE)
        if PW==3: p("  s_waitcnt vmcnt(0)")
        fill()
        if PW!=1: nonce(p)
        if QT: qtouch()
        p("  s_mov_b32 s60, 0\n  s_mov_b32 s61, 0\n  s_mov_b32 s62, 0")
        p.wait('lut')
        p("  s_barrier")
    lst('lut',pnames,'lut')
    p("L_p:")
    for b in range(ND):
        def pub():
            p("  s_cmp_eq_u32 s62, 0\n  s_cbranch_scc1 L_pa%d"%b); flag(p,4,"s61"); p("  s_add_u32 s61, s61, s58\nL_pa%d:"%b)
        if g('ef',1): lookup(p,32+16*b,6*(ND-1),120+8*b,hook=pub)
        else: lookup(p,32+16*b,6*(ND-1),120+8*b); pub()
        wstore(p,120+8*b,"s60")
        qload(p,32+16*b)
        if QT:
            p("  s_cmp_lt_u32 s62, 3\n  s_cbranch_scc0 L_qt%d"%b); qtouch(); p("L_qt%d:"%b)
        p("  v_add_u32 v4, s56, v4\n  v_add_u32 v5, s59, v5\n  s_add_u32 s62, s62, 1\n  s_add_u32 s60, s60, s57")
        if SHOT and b==1: p("  v_add_u32 v4, s56, v4\n  s_add_u32 s60, s60, s57")
        if ST:
            for it in (0,1,2,5,6,7):
                if it%ND==b:
                    n=len(pnames)
                    p("  s_cmp_eq_u32 s62, %d\n  s_cbranch_scc0 L_ps%d\n  s_memrealtime s[%d:%d]\nL_ps%d:"%(it+1,n,80+2*n,81+2*n,n)); pnames.append('s%d'%it)
        p("  s_cmp_lt_u32 s62, s55\n  s_cbranch_scc%d %s"%((1,"L_p") if b==ND-1 else (0,"L_pe")))
    p("L_pe:")
    flag(p,4,"s61")
    lst('end',pnames,'end')
    p("  s_cmp_eq_u32 s38, 0\n  s_cbranch_scc0 L_pz")
    arrive(p)
    p("  s_cmp_eq_u32 s2, 0\n  s_cbranch_scc0 L_pz\n  s_mov_b32 s63, 0\n  v_lshlrev_b32 v12, 6, v2\n  v_add_u32 v12, %d, v12"%AOFF)
    p("L_pw:")
    if not SPARE: p("  v_mov_b32 v13, 28\n  v_max_u32 v13, v13, v2")
    for k in range(4): p("  s_mov_b32 s53, %d\n  buffer_load_dwordx2 v[%d:%d], v12, %s, s53 offen sc1"%(4096*k,20+2*k,21+2*k,SW))
    p("  s_add_u32 s63, s63, 1\n  s_waitcnt vmcnt(0)\n  v_cmp_ne_u64 s[52:53], v[20:21], v[10:11]")
    if not SPARE: p("  s_and_b32 s52, s52, 0x0fffffff")
    for k in range(1,4): p("  v_cmp_ne_u64 vcc, v[%d:%d], v[10:11]\n  s_or_b64 s[52:53], s[52:53], vcc"%(20+2*k,21+2*k))
    p("  s_cbranch_scc0 L_pv\n  s_cmp_lt_u32 s63, %d\n  s_cbranch_scc1 L_pw"%(1 if g('ponly',0) else 20000))
    p("L_pv:\n  v_mov_b32 v12, %d\n  s_mov_b64 exec, 1\n  buffer_store_dwordx2 v[10:11], v12, %s, 0 offen sc1\n  s_mov_b64 exec, -1\nL_pz:"%(EOFF,SW))
    if ST:
        lout(pnames,0)
        open('names.txt','w').write(" ".join(names)+"\n"+" ".join(pnames))
    p("L_drain:\n  s_waitcnt vmcnt(0)\nL_done:\n  s_endpgm\nL_end:")
    return DOC(single)(a.text(),256,512,GLUT+16384 if XE15 else LDSZ,160+96,102,160)
if __name__=="__main__":
    kw=dict(x.split('=') for x in sys.argv[1:])
    kw={k:(int(v) if v.lstrip('-').isdigit() else v) for k,v in kw.items()}
    print(gen(**kw))
```

```python
import sys,struct
from common import *
from gc2 import Em

XST=32768; WST=16384; BUF=XST+WST
GLUT=3*BUF; LDSZ=GLUT+4096
FOFF=0x700000; EOFF=0x900000; AOFF=0x901000; WSZ=0x905000
SX,SQ,SL,SW,SO="s[16:19]","s[20:23]","s[24:27]","s[28:31]","s[32:35]"
ACC=16; PS,QS=0,48
KU=8

TEXT=""";
; out = x @ W, W[d,f] = lut[qw[d,f],f].  One launch, one workgroup per compute unit (generated by gen/gd4.py).
;  ids 32..255: 256x128 output tiles; waves 0-3 multiply (16x16x32 bf16, two k-steps chained per accumulator), waves 4-7 feed three LDS stage
;               buffers (x and dequantised W, LDS DMA).  Tile (mt,nt) first dequantises k-stage mt of column stripe nt (LDS table lookups) into
;               its own LDS image and into ws, then walks the k-stages in a rotated order.
;  ids 0..31  : helpers, dequantise k-stages 8..15 into ws.
;  W is handed over through ws: write-through stores, acknowledged, then a 64-bit tag derived from an epoch word in ws (advanced once per launch
;  after every workgroup has read it); readers poll the tag with scalar loads (bounded).  No step depends on where a workgroup runs.
;  The last three k-stages are done in four quarter-tile passes so that the output stores overlap the multiplications.
"""
def DOC(f): return lambda *a: f(*a).replace("\n.amdgcn_target","\n"+TEXT+".amdgcn_target",1)
def gen(**P):
    g=P.get
    a=Em(); ST=g('st',0); R=g('R',1); LR=R.bit_length()-1
    NS=g('ns',3); SPARE=g('spare',1)
    waux=g('waux','sc1'); laux=g('laux','sc1'); oaux=g('oaux','sc0 sc1')
    names=[]; pnames=[]
    def stamp(n,alt=None,alt2=None):
        if g('cs',0)==1: n=alt
        if g('cs',0)==2: n=alt2 if alt2 is not None else (n if n in (0,6) else None)
        if ST and n is not None: a("  s_memrealtime s[%d:%d]\n  s_memtime s[%d:%d]"%(64+4*n,65+4*n,66+4*n,67+4*n))
    def lst(nm,names=names,sel='lut,fl,B0,chk1,B1,B2,B3,B8,B13,B15'):
        if ST and nm in g('sn',sel).split(','):
            n=len(names); assert n<11
            a("  %s s[%d:%d]"%("s_memtime" if g('lm',0) else "s_memrealtime",80+2*n,81+2*n)); names.append(nm)
    def lout(names,wave):
        a("  s_waitcnt lgkmcnt(0)")
        for n in range(len(names)): a("  v_writelane_b32 v140, s%d, %d"%(80+2*n,n))
        a("  s_cmp_eq_u32 s38, %d\n  s_cbranch_scc0 L_done\n  s_mov_b32 s30, 0x10000000\n  s_lshl_b32 s3, s2, 8\n  s_add_u32 s3, s3, %d\n  v_lshl_add_u32 v9, v2, 2, s3\n  buffer_store_dword v140, v9, s[28:31], 0 offen"%(wave,(16<<20)+32768))
    def load_e(e): e("  s_add_u32 s10, s28, %d\n  s_addc_u32 s11, s29, 0\n  s_load_dwordx2 s[6:7], s[10:11], 0"%EOFF)
    def nonce(e,v=True):
        e("  s_waitcnt lgkmcnt(0)\n  s_mul_i32 s8, s6, 1664525\n  s_mul_i32 s9, s7, 22695477\n  s_add_u32 s8, s8, 1013904223\n  s_add_u32 s9, s9, 1")
        if v: e("  v_mov_b32 v10, s8\n  v_mov_b32 v11, s9")
    def arrive(e):
        e("  s_lshl_b32 s3, s2, 6\n  s_add_u32 s3, s3, %d\n  v_mov_b32 v12, s3\n  s_mov_b64 exec, 1"%AOFF)
        e("  buffer_store_dwordx2 v[10:11], v12, %s, 0 offen sc1\n  s_mov_b64 exec, -1"%SW)
    TR=g('tr',0)
    CM=g('cm',1)
    def taddr(e,scr_s):
        if CM:
            e("  v_lshrrev_b32 v1, 4, v3\n  v_lshlrev_b32 v1, 10, v1\n  v_lshl_add_u32 v1, v9, 3, v1\n  v_and_b32 v6, 15, v3\n  v_lshl_add_u32 v6, v6, 4, v1\n  v_add_u32 v6, %s, v6"%scr_s)
            e("  v_lshl_add_u32 v7, v2, 4, %s"%scr_s)
            return
        if TR:
            e("  v_lshrrev_b32 v1, 3, v3\n  v_lshlrev_b32 v1, 9, v1\n  v_lshl_add_u32 v1, v9, 3, v1\n  v_and_b32 v6, 1, v3\n  v_lshl_add_u32 v1, v6, 8, v1\n  v_bfe_u32 v6, v3, 1, 2\n  v_lshl_add_u32 v6, v6, 6, v1\n  v_add_u32 v6, %s, v6"%scr_s)
            e("  v_lshl_add_u32 v7, v2, 4, %s"%scr_s)
            return
        e("  v_and_b32 v1, 1, v3\n  v_lshlrev_b32 v1, 10, v1\n  v_lshl_add_u32 v1, v9, 3, v1\n  v_lshrrev_b32 v6, 1, v3\n  v_lshl_add_u32 v6, v6, 4, v1\n  v_add_u32 v6, %s, v6"%scr_s)
        e("  v_lshl_add_u32 v7, v2, 4, %s"%scr_s)
    def qload(e,Q):
        for i in range(4): e.v("  buffer_load_dwordx4 v[%d:%d], v4, %s, %s offen %s"%(Q+4*i,Q+3+4*i,SQ,"s%d"%(44+i) if i else "0",g('qaux','nt')),'q')
    def lookup(e,Q,young,O,dma=None,hook=None):
        for i in range(4):
            e("  s_waitcnt vmcnt(%d)"%(3-i+young+(i if dma else 0)))
            for j in range(4): e("  v_lshl_add_u32 v%d, v%d, 8, v5"%(Q+4*i+j,Q+4*i+j))
            for j in range(4): e("  ds_read_u16 v%d, v%d offset:%d"%(96+4*i+j,Q+4*i+j,(j>>1)*128+(j&1)*2))
            if dma: e.v(dma[i],'x0')
        if hook: hook()
        e("  s_waitcnt lgkmcnt(8)")
        for j in range(4): e("  v_lshl_or_b32 v%d, v%d, 16, v%d"%(112+2*j,100+j,96+j))
        for j in range(4):
            e("  s_waitcnt lgkmcnt(3)")
            e("  v_lshl_or_b32 v%d, v%d, 16, v%d"%(113+2*j,108+j,104+j))
            e("  ds_write_b64 v6, v[%d:%d] offset:%d"%(112+2*j,113+2*j,(16 if TR else 256)*j))
        e("  s_waitcnt lgkmcnt(0)")
        for j in range(2): e("  ds_read_b128 v[%d:%d], v7 offset:%d"%(O+4*j,O+3+4*j,1024*j))
    def wstore(e,O,so):
        for j in range(2):
            e("  s_waitcnt lgkmcnt(%d)"%(1-j))
            e("  buffer_store_dwordx4 v[%d:%d], v8, %s, %s offen offset:%d %s"%(O+4*j,O+3+4*j,SW,so,1024*j,waux))
    def flag(e,n,so):
        e("  s_waitcnt vmcnt(%d)\n  s_mov_b64 exec, %d"%(n,(1<<R)-1))
        e("  buffer_store_dwordx2 v[10:11], v14, %s, %s offen %s\n  s_mov_b64 exec, -1"%(SW,so,waux))

    HS=g('hs',0)
    def task_addr(e):
        e("  s_lshl_b32 s53, s38, 11\n  s_add_u32 s53, s53, %d"%XST)
        taddr(e,"s53")
        e("  s_lshl_b32 s53, s37, 18\n  s_lshl_b32 s54, s52, 11\n  s_add_u32 s53, s53, s54\n  v_lshl_add_u32 v8, v2, 4, s53")
        e("  s_lshl_b32 s53, s37, 6\n  s_lshr_b32 s54, s52, 1\n  s_add_u32 s53, s53, s54\n  s_lshl_b32 s53, s53, %d\n  s_and_b32 s54, s52, 1\n  s_lshl_b32 s54, s54, 3\n  s_add_u32 s53, s53, s54\n  s_add_u32 s53, s53, %d\n  v_lshl_add_u32 v14, v2, 7, s53"%(7+LR,FOFF))
    def sig(e,j,dst,sh,add=0):
        if HS and j==1: j=8
        elif HS and 1<j<=8: j-=1
        if j>=8: e("  s_mov_b32 %s, %d"%(dst,(j<<sh)+add)); return
        if g('rot',1)==0: e("  s_add_u32 %s, s36, %d\n  s_and_b32 %s, %s, 7\n  s_lshl_b32 %s, %s, %d"%(dst,j,dst,dst,dst,dst,sh))
        elif j==0: e("  s_lshl_b32 %s, s36, %d"%(dst,sh))
        elif j<5: e("  s_add_u32 %s, s40, %d\n  s_lshl_b32 %s, %s, %d"%(dst,j-1,dst,dst,sh))
        else: e("  s_xor_b32 %s, s40, %d\n  s_cmp_ge_u32 %s, s36\n  s_addc_u32 %s, %s, 0\n  s_lshl_b32 %s, %s, %d"%(dst,4+j-5,dst,dst,dst,dst,dst,sh))
        if add: e("  s_add_u32 %s, %s, %d"%(dst,dst,add))
    def touch_addr(e):
        e("  s_lshl_b32 s53, s37, 2\n  s_add_u32 s53, s53, s39\n  s_mul_i32 s53, s53, 3\n  s_min_u32 s53, s53, 253\n  s_lshl_b32 s54, s36, 8\n  s_add_u32 s53, s53, s54\n  s_lshl_b32 s53, s53, 11")
        e("  s_add_u32 s12, s16, s53\n  s_addc_u32 s13, s17, 0")
    def touch(e,j,d=68):
        if g('touch',1) and j<16:
            e("; prefetch of three x rows of a later k-step (values unused)")
            sig(e,j,"s58",7)
            for r in range(3):
                for h in range(2): e("  s_load_dword s%d, s[12:13], s58 offset:%d"%(d+2*r+h,r*2048+64*h))

    def xdma(s,l,hs=(0,1)):
        if 0 in hs: sig(l,s,"s41",7)
        for h in hs:
            if s==15 and h==0 and g('x15',1): l("  s_lshr_b32 s53, s60, 1\n  s_add_u32 m0, s53, %d\n  s_nop 0"%GLUT)
            else: l("  s_add_u32 m0, s60, %d"%((s%3)*BUF+4096*h)+("\n  s_add_u32 s41, s41, 65536" if h else "\n  s_nop 0"))
            for i in range(4): l.v("  buffer_load_dwordx4 v%d, %s, s41 offen offset:%d %s lds"%(16+i,SX,1024*i,g('xaux','')),'x%d'%s)
    CX=g('cx',0) and not g('xi',1)
    a("  s_cmp_ge_u32 s2, 256\n  s_cbranch_scc1 L_done")
    stamp(0,0)
    a("  s_load_dwordx2 s[24:25], s[0:1], 16\n  s_load_dwordx2 s[20:21], s[0:1], 8\n  s_load_dwordx2 s[28:29], s[0:1], 40\n  s_load_dwordx2 s[16:17], s[0:1], 0\n  s_load_dwordx2 s[32:33], s[0:1], 24")
    assert not g('xp',0) and not g('mm',0)
    def srds(e,L):
        for d,sz in L: e("  s_mov_b32 s%d, %d\n  s_mov_b32 s%d, 0x20000"%(d+2,sz,d+3))
    def head(e,lb):
        e("  v_lshrrev_b32 v1, 6, v0\n  v_and_b32 v3, 31, v0\n  v_readfirstlane_b32 s38, v1\n  v_bfe_u32 v9, v0, 5, 1")
        srds(e,((24,114688),(20,14680064)))
        e("  v_mul_u32_u24 v1, %d, v9\n  v_lshl_add_u32 v4, v3, 4, v1\n  v_lshlrev_b32 v1, 3, v3\n  v_lshl_add_u32 v16, v9, 2, v1"%(4*14336))
        e("  s_mul_i32 s53, s38, 14336\n  s_lshl_b32 s54, s37, 8\n  s_add_u32 s53, s53, s54\n  v_add_u32 v16, s53, v16\n  s_lshl_b32 s53, s38, 9\n  s_add_u32 m0, s53, %s\n  s_movk_i32 s50, %d"%(lb,7168-256))
        e("  s_lshl3_add_u32 s52, s36, s38\n  s_mul_i32 s53, s52, %d\n  s_lshl1_add_u32 s53, s54, s53\n  v_add_u32 v4, s53, v4"%(8*14336))
        e("  s_movk_i32 s45, 14336\n  s_movk_i32 s46, 28672\n  s_mov_b32 s47, 43008")
    def rest(e,lb):
        if g('op',2)!=2 or not g('sf0',0): srds(e,((28,WSZ),(16,4194304),(32,14680064)))
        e("  v_and_b32 v2, 63, v0\n  v_lshlrev_b32 v5, 2, v3\n  s_and_b32 s39, s38, 3")
        if lb: e("  v_add_u32 v5, %d, v5"%lb)
    OP=g('op',2)
    if OP==0: a("  s_cmp_lt_u32 s2, 32\n  s_cbranch_scc1 L_prod")
    a("  s_and_b32 s3, s2, 1\n  s_bfe_u32 s36, s2, 0x20003\n  s_lshl2_add_u32 s36, s3, s36")
    a("  s_bfe_u32 s3, s2, 0x20001\n  s_mul_i32 s3, s3, 7\n  s_lshr_b32 s37, s2, 5\n  s_add_u32 s37, s37, s3\n  s_sub_u32 s37, s37, 1")
    if OP==2:
        a("  s_sub_u32 s3, s2, 28\n  s_mul_i32 s53, s3, 7\n  s_cmp_lt_u32 s3, 4")
        a("  s_cselect_b32 s51, 15, 8\n  s_cselect_b32 s53, s53, s2" if SPARE else "  s_cbranch_scc1 L_done\n  s_mov_b32 s51, 8\n  s_mov_b32 s53, s2")
        a("  s_cmp_lt_u32 s2, 32\n  s_cselect_b32 s36, s51, s36\n  s_cselect_b32 s37, s53, s37\n  s_cselect_b32 s51, 0, %d"%GLUT)
        head(a,"s51")
        if g('sf0',0): srds(a,((28,WSZ),(16,4194304),(32,14680064)))
        if g('pi',3)==1: a("  v_and_b32 v20, 63, v0\n  v_lshlrev_b32 v20, 20, v20")
        a("  s_cmp_lt_u32 s2, 32")
    else: head(a,GLUT)
    if OP==1: a("  s_cmp_lt_u32 s2, 32\n  s_cbranch_scc1 L_prod")
    a("  s_waitcnt lgkmcnt(0)")
    LL=g('ll',0)
    if ST: names.append("start"); a("  s_mov_b32 s80, s64")
    lst('ka')
    def lutdma(e,v="v16"):
        e.v("  buffer_load_dword %s, %s, 0 offen lds"%(v,SL),'lut'); e.v("  buffer_load_dword %s, %s, s50 offen offset:256 lds"%(v,SL),'lut')
    if not LL: lutdma(a)
    def pages(e,L):
        if not L: return
        if g('pi',3)!=1: e("  v_and_b32 v20, 63, v0\n  v_lshlrev_b32 v20, 20, v20")
        for k,srd in enumerate(L): e("  buffer_load_dword v%d, v20, %s, 0 offen"%(64+k,srd))
    assert OP==2 and not HS
    PE=g('pe',0); PI=g('pi',3)
    def ipf(e):
        n=g('ip',8)
        if not n: return
        e("; instruction prefetch: each helper wave touches 512 bytes of this kernel's own code (values unused, range clamped to the code)")
        e("  s_getpc_b64 s[14:15]\nL_pc:\n  s_lshr_b32 s53, s2, 3\n  s_lshl3_add_u32 s53, s53, s38\n  s_mul_i32 s53, s53, %d\n  s_min_u32 s53, s53, L_end-%s_kernel-%d\n  s_sub_u32 s14, s14, L_pc-%s_kernel\n  s_subb_u32 s15, s15, 0"%(64*n,NAME,64*n,NAME))
        for k in range(n): e("  s_load_dword s%d, s[14:15], s53 offset:%d"%(68+k,64*k))
    PG=(SQ,SW,SX,SO)[:PE]
    if PI==0: a("  s_cbranch_scc1 L_prod")
    if PI in (1,3): a("  s_cbranch_scc1 L_h")
    if PI==2:
        a("  s_cbranch_scc0 L_ng"); pages(a,PG); ipf(a); a("  s_branch L_prod\nL_ng:")
    PK=g('pk',0)
    if PK:
        load_e(a)
        a("  s_and_b32 s3, s36, 3\n  s_cmp_ge_u32 s3, %d\n  s_cbranch_scc0 L_q\n  s_waitcnt lgkmcnt(0)\nL_q:"%PK)
    qload(a,32)
    lst('qi')
    if PI==3:
        load_e(a); a("  s_branch L_ng\nL_h:"); pages(a,PG); ipf(a); a("  s_branch L_prod\nL_ng:")
    if PI==1:
        a("L_h:\n  s_cselect_b64 exec, -1, 0"); pages(a,PG); a.vm+=['pg']*PE
        a("  s_mov_b64 exec, -1\n  s_cbranch_scc1 L_prod")
    if not PK and PI!=3: load_e(a)
    rest(a,GLUT)
    if LL:
        a("  s_mul_i32 s53, s38, 14336\n  s_lshl_b32 s54, s37, 8\n  s_add_u32 s53, s53, s54\n  v_mov_b32 v21, v16")
        if LL==1:
            a("  s_and_b32 s54, s36, 3\n  s_lshl_b32 s54, s54, 6\n  s_add_u32 s53, s53, s54\n  s_load_dword s68, s[24:25], s53\n  s_load_dword s69, s[24:25], s53 offset:7168")
        else:
            for k in range(8): a("  s_load_dword s%d, s[24:25], s53 offset:%d"%(68+k,(k>>2)*7168+(k&3)*64))
    task_addr(a); touch_addr(a)
    a("  s_andn2_b32 s40, 4, s36")
    if g('t0',0) and not g('xp',0):
        a("  s_cmp_ge_u32 s38, 4\n  s_cbranch_scc%d L_la"%(g('t0',0)-1)); touch(a,0,92); a("L_la:")
    a("  v_and_b32 v3, 15, v2\n  v_lshrrev_b32 v9, 4, v2")
    a("  v_lshrrev_b32 v1, 1, v3\n  v_xor_b32 v1, v1, v9\n  v_lshlrev_b32 v1, 4, v1\n  v_lshl_add_u32 v144, v3, 7, v1\n  s_lshl_b32 s54, s38, 13\n  v_add_u32 v144, s54, v144\n  v_xor_b32 v145, 64, v144")
    a("  v_lshlrev_b32 v1, 11, v9\n  v_lshl_add_u32 v146, v3, 4, v1\n  v_add_u32 v146, %d, v146"%XST)
    a("  s_lshl_b32 s52, s36, 8\n  s_lshl_b32 s53, s38, 6\n  s_add_u32 s52, s52, s53\n  s_mul_i32 s52, s52, 7168\n  s_lshl_b32 s53, s37, 8\n  s_add_u32 s52, s52, s53")
    if CM: a("  v_and_b32 v1, 1, v3\n  v_lshl_add_u32 v1, v9, 2, v1\n  v_mul_u32_u24 v1, 7168, v1\n  v_lshrrev_b32 v147, 1, v3\n  v_lshl_add_u32 v1, v147, 4, v1\n  v_add_u32 v147, s52, v1")
    elif TR: a("  v_mul_u32_u24 v1, 7168, v3\n  v_lshl_add_u32 v1, v9, 4, v1\n  v_add_u32 v147, s52, v1")
    else: a("  v_mul_u32_u24 v1, 28672, v9\n  v_lshl_add_u32 v1, v3, 4, v1\n  v_add_u32 v147, s52, v1")
    a("  v_lshrrev_b32 v20, 3, v2\n  v_lshlrev_b32 v20, 11, v20\n  v_lshrrev_b32 v1, 4, v2\n  v_xor_b32 v1, v1, v2\n  v_and_b32 v1, 7, v1\n  v_lshl_add_u32 v20, v1, 4, v20")
    a("  s_lshl_b32 s52, s36, 19\n  s_lshl_b32 s53, s39, 17\n  s_add_u32 s53, s52, s53\n  v_add_u32 v16, s53, v20\n  v_xor_b32 v17, 64, v16")
    a("  v_add_u32 v18, %d, v16\n  v_add_u32 v19, %d, v17\n  v_add_u32 v17, %d, v17\n  s_lshl_b32 s60, s39, 13"%(2*15360,3*15360,15360))
    a("  s_lshl_b32 s53, s37, 18\n  s_lshl_b32 s54, s39, 12\n  s_add_u32 s53, s53, s54\n  v_lshl_add_u32 v20, v2, 4, s53\n  s_add_u32 s61, s54, %d"%XST)
    a("  s_lshl_b32 s53, s37, %d\n  s_lshl_b32 s54, s39, %d\n  s_add_u32 s53, s53, s54\n  s_and_b32 s54, s36, %d\n  s_lshl_b32 s54, s54, 7\n  s_add_u32 s53, s53, s54\n  s_add_u32 s53, s53, %d"%(13+LR,7+LR,R-1,FOFF))
    a("  s_add_u32 s4, s28, s53\n  s_addc_u32 s5, s29, 0")
    XI=g('xi',1); XP=g('xp',0)
    if LL: nonce(a); lutdma(a,"v21")
    if XI:
        sig(a,0,"s41",7)
        a("  s_lshr_b32 s53, s38, 2\n  s_lshl_b32 s54, s53, 16\n  s_add_u32 s41, s41, s54\n  s_lshl_b32 s53, s53, 12\n  s_add_u32 m0, s60, s53")
    NL=g('nl',0)
    lst('pre')
    if not LL and not NL: nonce(a)
    lst('non')
    a.wait('lut')
    a("  s_barrier")
    lst('lut')
    if g('cs',0)==1: stamp(0,1); a("  s_waitcnt vmcnt(0)"); stamp(0,2)
    lookup(a,32,PE if PI==1 else 0,148,["  buffer_load_dwordx4 v%d, %s, s41 offen offset:%d lds"%(16+i,SX,1024*i) for i in range(4)] if XI else None)
    wstore(a,148,"0"); a.vm+=['ws','ws']
    if NL: nonce(a)
    a("  s_cmp_ge_u32 s38, 4\n  s_cbranch_scc1 L_loader")

    c=a
    if g('cs',0)==1: stamp(0,3)
    if CX: xdma(0,c)
    if not XP: touch(c,1,92); touch(c,2,92)
    c("  v_mov_b32 v5, v144\n  v_mov_b32 v6, v145\n  v_mov_b32 v7, v146")
    for r in range(128): c("  v_mov_b32 v%d, 0"%(ACC+r))
    flag(c,c.cnt('ws'),"0")
    if g('c3',0): touch(c,3,92)
    for k in range(16): c("  s_mov_b32 s%d, %d"%(44+k,((k>>2)*16+(k&3))*7168))
    c("  s_mov_b32 s60, 0\n  s_mov_b32 s61, 0")
    if g('prio',0): c("  s_setprio 1")
    def frag(setb,kind,n):
        b=setb+(4*n if kind=='x' else 16+4*n)
        return "a[%d:%d]"%(b,b+3)
    def reads(setb,ks,ms=(0,1,2,3),vx=5,vw=7):
        xs=["  ds_read_b128 %s, v%d offset:%d"%(frag(setb,'x',i),vx+ks,2048*i) for i in ms]
        ws=["  ds_read_b128 %s, v%d offset:%d"%(frag(setb,'w',t),vw,ks*4*2048+256*t) for t in range(8)]
        return [ws[0]]+xs+ws[1:]
    def block(setb,fill,ms=(0,1,2,3),imajor=False):
        order=[(t,i) for i in ms for t in range(8)] if imajor else [(t,i) for t in range(8) for i in ms]
        for n,(t,i) in enumerate(order):
            acc=ACC+(i*8+t)*4
            c("  v_mfma_f32_16x16x32_bf16 v[%d:%d], %s, %s, v[%d:%d]"%(acc,acc+3,frag(setb,'x',i),frag(setb,'w',t),acc,acc+3))
            for x in fill.get(n,[]): c(x)
    def spread(items,first,step,fill=None):
        fill={} if fill is None else fill
        for k,x in enumerate(items): fill.setdefault(first+k*step,[]).append(x)
        return fill
    def even(items,n,fill,first=0):
        for k,x in enumerate(items): fill.setdefault(first+k*n//len(items),[]).append(x)
        return fill
    tsel=[0]
    def cvst(i,r):
        if CM:
            n=tsel[0]; tsel[0]+=1
            T,rp=r>>1,2*(r&1); tb=152+4*(n%2)
            cv=lambda d,p,row:"  v_cvt_pk_bf16_f32 v%d, v%d, v%d"%(d,ACC+(i*8+4*T+2*p)*4+row,ACC+(i*8+4*T+2*p+1)*4+row)
            A=[cv(148,0,rp),cv(149,1,rp)]; B=[cv(150,0,rp+1),cv(151,1,rp+1)]
            cn=lambda d,x,y:"  v_cndmask_b32_dpp v%d, v%d, v%d, vcc quad_perm:[1,0,3,2] row_mask:0xf bank_mask:0xf"%(d,x,y)
            lo=[cn(tb,150,148),cn(tb+1,151,149)]; hi=[cn(tb+2,148,150),cn(tb+3,149,151)]
            L=(B+A+lo+["  s_not_b64 vcc, vcc"]+hi) if n%2==0 else (A+B+hi+["  s_not_b64 vcc, vcc"]+lo)
            L.append("  buffer_store_dwordx4 v[%d:%d], v147, %s, s%d offen offset:%d %s"%(tb,tb+3,SO,44+i*4+rp,128*T,oaux))
            return L
        tb=148+4*(tsel[0]%3); tsel[0]+=1
        if TR:
            L=["  v_cvt_pk_bf16_f32 v%d, v%d, v%d"%(tb+p,ACC+(i*8+2*r)*4+2*p,ACC+(i*8+2*r)*4+2*p+1) for p in range(4)]
            L.append("  buffer_store_dwordx4 v[%d:%d], v147, %s, s%d offen offset:%d %s"%(tb,tb+3,SO,44+i*4,64*r,oaux))
            return L
        L=["  v_cvt_pk_bf16_f32 v%d, v%d, v%d"%(tb+p,ACC+(i*8+2*p)*4+r,ACC+(i*8+2*p+1)*4+r) for p in range(4)]
        L.append("  buffer_store_dwordx4 v[%d:%d], v147, %s, s%d offen %s"%(tb,tb+3,SO,44+i*4+r,oaux))
        return L
    L15=g('l15',2) if g('ch',1) else 0
    XE15=g('x15',1)
    def chain():
        sp=[x.split(':') for x in str(g('ps','01:01,01:23,23:01,23:23')).split(',')]
        passes=[tuple(int(y) for y in x[0]) for x in sp]
        tsets=[tuple(t for y in x[1] for t in (2*int(y),2*int(y)+1)) if len(x)>1 else tuple(range(8)) for x in sp]
        assert TR or CM or all(len(T)==8 for T in tsets)
        S0=13
        units=[(s,(0,1,2,3),tuple(range(8))) for s in range(S0)]+[(s,H,T) for H,T in zip(passes,tsets) for s in range(S0,16)]
        pend=[S0+3*p+2 for p in range(len(passes))]
        if g('uo',0): units[S0+2],units[S0+3]=units[S0+3],units[S0+2]; pend[0]+=1
        def stores(p):
            L=sum([cvst(i,r) for i in passes[p] for r in range(4) if 2*r in tsets[p]],[])
            if p>=len(passes)-g('nla',0): L=[x.replace(oaux,g('la','')) for x in L]
            return L
        IMU=(pend if g('ia',0) else pend[-1:]) if g('im',2)==2 else []
        TC=g('tc',0)
        pairs=[]
        for u,(s,H,T) in enumerate(units):
            if u<S0 or TC: pairs+=[(u,t,i,(0,1)) for t in T for i in H]
            elif u in IMU: pairs+=[(u,t,i,(ks,)) for i in H for ks in (0,1) for t in T]
            elif u==len(units)-1 and g('im',2): pairs+=[(u,t,i,(0,)) for t in T for i in H]+[(u,t,i,(1,)) for i in H for t in T]
            else: pairs+=[(u,t,i,(ks,)) for ks in (0,1) for t in T for i in H]
        ustart={}
        for n,(u,t,i,K) in enumerate(pairs): ustart.setdefault(u,n)
        first={}; last={}
        for n,(u,t,i,K) in enumerate(pairs):
            for ks in K:
                for k in (('x',u,i,ks),('w',u,t,ks)): first.setdefault(k,n); last[k]=n
        LT=g('lt',8 if TC else 16)
        def want(k):
            kind,u,j,ks=k
            if u<S0: return first[k]-12 if kind=='w' else ustart[u]-11+(0,0,1,1,2,4,5,6)[2*j+ks]
            w=first[k]-LT
            if g('tb',1) and not TC:
                H,T=units[u][1:]; nb=len(T)*len(H); b0=ustart[u]+ks*nb
                rank=(1+H.index(j)) if kind=='x' else (0 if j==T[0] else len(H)+T.index(j))
                if u in IMU and ks: b0-=nb//2
                w=b0-g('lb',16)+rank//(g('rp0',2) if u<=S0+3 else g('rpt',2))
            if w<ustart[S0] and not TC: w=ustart[S0]-(ustart[S0]-w+1)//2
            return max(w,ustart[S0]-12)
        keys=sorted(first,key=lambda k:(want(k),first[k],k[0]=='x',k[3]))
        areg={0:(144,146),1:(8,10),2:(11,13)}
        slot={}; owner=[None]*24; early=[False]; mid={}
        def place(k,n):
            kind,u,j,ks=k
            if u<S0: sl=(u&1)*8+2*j+ks if kind=='x' else 16+(j&3)*2+ks
            else:
                fr=[q for q in range(24) if owner[q] is None or last[owner[q]]<=n]
                if not fr: return None
                sl=min(fr,key=lambda q:-1 if owner[q] is None else last[owner[q]])
            assert owner[sl] is None or last[owner[sl]]<=n,(k,n)
            early[0]=owner[sl] is None or last[owner[sl]]<n
            owner[sl]=k; slot[k]=sl
            s=units[u][0]; vx,vw=((5,7),(3,1))[u&1] if u<S0 else areg[s%3]
            if XE15 and s==15 and kind=='x' and j<2: vx=14
            if kind=='x': return "  ds_read_b128 a[%d:%d], v%d offset:%d"%(4*sl,4*sl+3,vx+ks,2048*j)
            return "  ds_read_b128 a[%d:%d], v%d offset:%d"%(4*sl,4*sl+3,vw,ks*8192+256*j)
        out=[]; issued={}
        def size(x): return 4 if (x.split()[0] in ('s_waitcnt','s_barrier','s_nop','s_cselect_b32','s_cbranch_scc0','s_sub_u32','s_not_b64') or x.endswith('s62') or (x.split()[0]=='v_add_u32' and ', s60,' in x)) else 8
        text={u:[] for u in range(-1,len(units))}
        RPG=g('rpg',2); kq=list(keys); opened=0
        fl={}
        def at(n,x): fl.setdefault(n,[]).append(x)
        bar={}
        for u in range(S0):
            b=ustart[u]; bar[b+19]=u+1
            if u<S0-1:
                vx,vw=((3,1),(5,7))[u&1]
                at(b+1,"  s_cmp_eq_u32 s60, %d"%(3*BUF)); at(b+2,"  s_cselect_b32 s60, 0, s60"); at(b+2,"  v_add_u32 v%d, s60, v146"%vw)
                at(b+11,"  v_add_u32 v%d, s60, v144"%vx); at(b+13,"  v_add_u32_e64 v%d, s60, v145"%(vx+1)); at(b+31,"  s_add_u32 s60, s60, s62")
                if u&1: at(b+31,"  s_sub_u32 s61, s61, 1")
            else:
                if XE15: at(b+14,"  v_add_u32_e64 v14, s63, v144"); at(b+15,"  v_add_u32_e64 v15, s63, v145")
                for q,b3 in enumerate((1,2)):
                    vx,vw=areg[b3]
                    at(b+2+6*q,"  v_add_u32 v%d, %d, v144"%(vx,b3*BUF)); at(b+3+6*q,"  v_add_u32 v%d, %d, v145"%(vx+1,b3*BUF)); at(b+6+6*q,"  v_add_u32 v%d, %d, v146"%(vw,b3*BUF))
        for p in range(len(passes)-1):
            b=ustart[pend[p]+1]; e=ustart.get(pend[p+1]+1,len(pairs))
            L=stores(p)
            if pend[p] in IMU:
                h=g('fh',10)
                for q,x in enumerate(L[:h]): at(b-5+q*5//h,x)
                L=L[h:]
            span=max(1,int((e-b-1)*g('sf',65)/100))
            if g('av',3):
                gaps=[n for n in range(b+2,b+2+span) if (n-b)%8>=g('av',3)]
                for q,x in enumerate(L): at(gaps[q*len(gaps)//len(L)],x)
                continue
            for q,x in enumerate(L): at(b+(0 if TC else 2)+q*span//len(L),x)
        FIN=stores(len(passes)-1)
        if g('im',2)==2:
            h=g('fh',10); n0=len(pairs)-8
            for q,x in enumerate(FIN[:h]): at(n0+3+q*5//h,x)
            FIN=FIN[h:]
        for n in range(-12,len(pairs)):
            T=text[pairs[n][0] if n>=0 else -1]
            if n>=0:
                u,t,i,K=pairs[n]; acc=ACC+(i*8+t)*4
                for ks in K:
                    X,W=slot[('x',u,i,ks)],slot[('w',u,t,ks)]
                    assert ('x',u,i,ks) not in out and ('w',u,t,ks) not in out
                    if TR: X,W=W,X
                    T.append("  v_mfma_f32_16x16x32_bf16 v[%d:%d], a[%d:%d], a[%d:%d], v[%d:%d]"%(acc,acc+3,4*X,4*X+3,4*W,4*W+3,acc,acc+3))
            G=[]; mid.clear()
            if n in bar:
                G+=["  s_waitcnt lgkmcnt(0)","  s_barrier"]; out.clear(); opened=bar[n]
            G+=fl.get(n,[])
            k=0
            while kq and k<(RPG if n<ustart[S0] else g('rpt',3 if TC else 2)) and want(kq[0])<=n:
                s=units[kq[0][1]][0]
                if L15 and s==15 and kq[0][2]>=(2 if kq[0][0]=='x' else 4 if L15==2 else 8): s=16
                if s>opened and s<=S0: break
                r=place(kq[0],n)
                if r is None: break
                if s>opened: G.append("  s_barrier"); opened=s
                mid[len(G)]=early[0]
                G.append(r); out.append(kq[0]); issued[kq[0]]=n; kq.pop(0); k+=1
            if n+1<len(pairs) and n>=-1:
                need=lambda m:[(a_,pairs[m][0],b_,ks) for ks in pairs[m][3] for a_,b_ in (('x',pairs[m][2]),('w',pairs[m][1]))]
                for k in need(n+1): assert k in issued,(k,n)
                if any(k in out for k in need(n+1)):
                    idx=max(out.index(k) for k in need(n+1) if k in out)
                    while idx+1<len(out) and issued[out[idx+1]]<=n-(g('age',3) if n<ustart[S0]+(10**6 if TC else 0) else g('aget',5)): idx+=1
                    G.append("  s_waitcnt lgkmcnt(%d)"%min(15,len(out)-1-idx)); del out[:max(idx+1,len(out)-15)]
            if n>=0 and n+1 in ustart.values() and pairs[n][0]<S0-1 and pairs[n][0]&1: G.append("  s_cbranch_scc0 L_c")
            if n>=0 and sum(size(x) for x in G)%8: G.insert(len(G)-1 if G[-1].startswith("  s_cbranch") else len(G),"  s_nop 0")
            if g('mp',1) and n>=0 and len(pairs[n][3])==2 and len(G)>=2:
                k=0
                if size(G[0])==8 and mid.get(0,True): k=1
                elif G[0].split()[0]=='s_add_u32' and G[1].split()[0]=='s_sub_u32': k=2
                T[-1:-1]=G[:k]; G=G[k:]
            T+=G
        for u in range(2,S0-1): assert text[u]==text[u&1],u
        c("  s_mov_b32 s60, %d\n  s_mov_b32 s61, 5\n  s_mov_b32 s62, %d"%(BUF,BUF))
        if XE15: c("  s_lshl_b32 s63, s38, 12\n  s_sub_u32 s63, %d, s63"%GLUT)
        if CM: c("  s_mov_b32 vcc_lo, 0x55555555\n  s_mov_b32 vcc_hi, 0x55555555")
        stamp(1,4)
        c("  s_barrier")
        stamp(2,5)
        for x in text[-1][:-1]: c(x)
        c("  s_cmp_eq_u32 s38, 0\n  s_cbranch_scc0 L_c0")
        arrive(c)
        c("L_c0:\n"+text[-1][-1])
        c("; ---- k-steps 0..11, two per round\n.p2align 6\nL_c:")
        for x in text[0]+text[1]: c(x)
        stamp(3)
        for u in range(S0-1,len(units)):
            if (u-S0)%3==0: stamp(None,None,1+(u-S0)//3)
            for x in text[u]: c(x)
        stamp(None,None,5)
        stamp(4)
        if TC or not g('im',2) or len(passes[-1])<2 or len(tsets[-1])<8: c("  s_nop 7")
        c("L_fin:")
        for x in FIN: c(x)
    def plain():
        stamp(1,4)
        c("  s_barrier")
        if CX: c("  s_waitcnt vmcnt(1)")
        stamp(2,5)
        for r in reads(PS,0): c(r)
        c("  s_cmp_eq_u32 s38, 0\n  s_cbranch_scc0 L_c0")
        arrive(c)
        c("L_c0:\n  s_waitcnt lgkmcnt(0)")
        NLOOP=15 if NS==0 else 15-NS
        f1={1:["  s_add_u32 s60, s60, %d"%BUF],3:["  s_cmp_eq_u32 s60, %d"%(3*BUF)],5:["  s_cselect_b32 s60, 0, s60\n  s_add_u32 s61, s61, 1"]}
        f2={0:["  v_add_u32 v7, s60, v146\n  v_add_u32 v5, s60, v144"],2:["  v_add_u32 v6, s60, v145\n  s_cmp_lt_u32 s61, %d"%NLOOP]}
        c(".p2align 6\nL_c:")
        block(PS,spread(reads(QS,1),1,2,dict(f1)))
        c("  s_waitcnt lgkmcnt(0)\n  s_barrier")
        block(QS,spread(reads(PS,0),1,2,dict(f2)))
        c("  s_waitcnt lgkmcnt(0)\n  s_cbranch_scc1 L_c")
        stamp(3)
        if NS==0:
            block(PS,spread(reads(QS,1),1,2))
            c("  s_waitcnt lgkmcnt(0)\n  s_nop 0")
            block(QS,{},imajor=True)
            stamp(4)
            for i in range(4):
                for r in range(4):
                    for x in cvst(i,r): c(x)
        else:
            H1,H2=(0,1),(2,3)
            S0=16-NS
            areg={0:(144,146),1:(8,10),2:(11,13)}
            setup=[]
            for b in (1,2):
                vx,vw=areg[b]
                setup+=["  v_add_u32 v%d, %d, v144"%(vx,b*BUF),"  v_add_u32 v%d, %d, v145"%(vx+1,b*BUF),"  v_add_u32 v%d, %d, v146"%(vw,b*BUF)]
            def rd(setb,s,ks,ms): return reads(setb,ks,ms,*areg[s%3])
            block(PS,spread(setup,2,2,spread(reads(QS,1),1,2)))
            c("  s_waitcnt lgkmcnt(0)\n  s_barrier")
            block(QS,spread(rd(PS,S0,0,H1),1,2))
            c("  s_waitcnt lgkmcnt(0)\n  s_nop 0")
            seq=[(s,ks,H) for H in (H1,H2) for s in range(S0,16) for ks in (0,1)]
            st1=sum([cvst(i,r) for i in H1 for r in range(4)],[])
            npart=min(2*NS-1,g('np',4)); per=(8+npart-1)//npart*5
            tl=cvst(2,0)+cvst(2,1)+cvst(2,2)+cvst(2,3)+cvst(3,0)+cvst(3,1)+cvst(3,2)+cvst(3,3)
            for n,(s,ks,H) in enumerate(seq):
                setb=PS if n%2==0 else QS; oth=QS if n%2==0 else PS
                f={}
                if n+1<len(seq):
                    s2,k2,Hn=seq[n+1]
                    spread(rd(oth,s2,k2,Hn),0,1,f)
                if H==H2:
                    k=n-2*NS
                    part=st1[k*per:(k+1)*per]
                    if part: even(part,15,f,1 if k else 2) if k else even(part,13,f,2)
                last=(n==len(seq)-1)
                if last: f.setdefault(15,[]).extend(tl[:0])
                block(setb,f,H,imajor=(last or n==2*NS-1))
                if last: break
                nb = (H==H1 and ks==0 and s<15)
                c("  s_waitcnt lgkmcnt(0)\n  "+("s_barrier" if nb else "s_nop 0"))
            stamp(4)
            for x in tl: c(x)
    if g('ch',1): chain()
    else: plain()
    if ST:
        stamp(5)
        c("  s_waitcnt vmcnt(0)")
        stamp(6,6)
        c("  s_waitcnt lgkmcnt(0)\n  s_cmp_eq_u32 s38, 0\n  s_cbranch_scc0 L_done\n  s_mov_b32 s30, 0x10000000")
        for n in range(7): c("  v_writelane_b32 v8, s%d, %d\n  v_writelane_b32 v8, s%d, %d"%(64+4*n,2*n,66+4*n,2*n+1))
        c("  s_lshl_b32 s3, s2, 6\n  s_add_u32 s3, s3, %d\n  v_lshl_add_u32 v9, v2, 2, s3\n  v_cmp_gt_u32 vcc, 16, v2\n  s_and_saveexec_b64 s[60:61], vcc\n  buffer_store_dword v8, v9, s[28:31], 0 offen"%((16<<20)+16384))
    c("  s_endpgm")

    l=Em(a.o); l.vm=['ws','ws']
    l("; ---- loader waves\nL_loader:")
    if g('lprio',0): l("  s_setprio %d"%g('lprio'))
    def wdma(s,I=None):
        if I is None: I=(0,2) if (s==15 and L15==2) else range(4)
        l("  s_add_u32 m0, s61, %d"%((s%3)*BUF)); sig(l,s,"s62",14)
        for i in I: l.v("  buffer_load_dwordx4 v20, %s, s62 offen offset:%d %s lds"%(SW,1024*i,laux),'W%d'%s)
    def poll(s,first=True):
        if first: sig(l,s,"s43",9+LR)
        l("  s_load_dwordx4 s[64:67], s[4:5], s43 glc")
    def check(s):
        l("  s_mov_b32 s63, 0\nL_sp%d:"%s)
        l("  s_waitcnt lgkmcnt(0)\n  s_xor_b64 s[10:11], s[64:65], s[8:9]\n  s_xor_b64 s[14:15], s[66:67], s[8:9]\n  s_or_b64 s[10:11], s[10:11], s[14:15]\n  s_cbranch_scc0 L_ok%d"%s)
        poll(s,False)
        l("  s_add_u32 s63, s63, 1\n  s_cmp_lt_u32 s63, 20000\n  s_cbranch_scc1 L_sp%d\n  s_waitcnt lgkmcnt(0)\nL_ok%d:"%(s,s))
    TD=g('td',6)
    X1=g('x1',1); D2=g('d2',0)
    if XP:
        touch0=touch
        def touch(e,j,d=68):
            if j>=8: touch0(e,j,d)
    XO=g('xo',0); TP=g('tp',2)
    TS=min(TD,g('ts',4))
    if TP==2:
        for j in range(3,TS): touch(l,j)
    if not CX and not XI and XO!=1: xdma(0,l,(0,1) if XO==0 else (0,))
    if X1==2: xdma(1,l)
    lst('x0i')
    flag(l,l.cnt('ws'),"0"); l.vm.append('fl')
    lst('fl')
    if XO: xdma(0,l,(0,1) if XO==1 else (1,))
    if X1>=3: poll(1); xdma(1,l,(0,1) if X1==3 else (0,))
    if TP==1:
        for j in range(3,TD): touch(l,j)
    if not CX and not XI: l.wait('x0')
    l("  s_barrier")
    lst('B0')
    if X1<3 and not g('p1',0): poll(1)
    units=[]
    for s in range(1,16): units+=[('x',s,0),('x',s,1),('w',s,0)] if (s<3 or s>14 or not g('wf1',0)) else [('w',s,0),('x',s,0),('x',s,1)]
    if X1==0: units[0:3]=[units[2],units[0],units[1]]
    if g('o1',0): units[0:6]=[units[int(ch)] for ch in str(g('o1'))[1:]]
    XS={2:2,3:2,4:1}.get(X1,0)
    units=units[XS:]
    if L15: units[-3:]=[units[-1],units[-3]]
    if XE15: units[-2:]=[units[-1],units[-2]]
    LD=[int(x) for x in str(g('ld','6')).split(',')]
    done=0; nt=4; tdone=[-1]
    for i in range(14):
        k=min(len(units),(LD[i] if i<len(LD) else 3*(i+2))-XS+(1 if XE15 and i==12 else 0))
        def tch():
            nonlocal nt
            if TP: nt=max(nt,TS)
            if tdone[0]==i: return
            tdone[0]=i
            for j in range(nt,min(i+(TD if i>=g('cu',2) else TS),nt+1)+1): touch(l,j); nt=j+1
        for kind,s,h in units[done:k]:
            if kind=='x':
                xdma(s,l,(h,))
                if s==1 and h+1==g('p1',0): poll(1)
            else:
                check(s)
                if s==1: lst('chk1')
                if s<15: poll(s+1)
                if g('tq',1) and s==i+2: tch()
                wdma(s)
        done=k
        tch()
        l("  s_waitcnt vmcnt(%d)"%min(l.cnt('W%d'%(i+1)),l.cnt('x%d'%(i+1))))
        l("  s_barrier")
        lst('B%d'%(i+1))
    assert done==len(units)
    if L15:
        if L15==2: wdma(15,(1,3))
        xdma(15,l,(1,))
        OT=g('ot',0)
        if OT: l("  v_subrev_u32 v21, %d, v147\n  buffer_load_dword v22, v21, %s, 0 offen"%(256*7168,SO))
        l("  s_waitcnt vmcnt(%d)\n  s_barrier"%((4 if L15==1 else 6)+OT))
        lst('B15')
        l("  s_waitcnt vmcnt(%d)\n  s_barrier"%OT)
        if OT: l("  s_waitcnt vmcnt(0)")
    else:
        l.wait('W15')
        l("  s_barrier")
        lst('B15')
    if ST: lout(names,g('lw',4))
    if g('wf',0) and not ST:
        for k in range(8,16): l("  s_mov_b32 s%d, 0"%(44+k))
        l("  s_mov_b64 exec, 0\n  s_branch L_fin")
    l("  s_endpgm")

    p=Em(a.o); p.vm=['lut']
    p("; ---- helper workgroups\nL_prod:")
    if PI<2: ipf(p)
    rest(p,0)
    if PI==0: pages(p,PG)
    if OP==2: pass
    else:
        p("  s_mov_b32 s36, 8\n  s_mov_b32 s37, s2\n  s_sub_u32 s3, s2, 28\n  s_mul_i32 s53, s3, 7\n  s_cmp_lt_u32 s3, 4")
        p("  s_cselect_b32 s36, 15, s36\n  s_cselect_b32 s37, s53, s37" if SPARE else "  s_cbranch_scc1 L_done")
        head(p,0); rest(p,0)
        p("  s_waitcnt lgkmcnt(0)")
        p.vm=[]; lutdma(p)
    if ST: pnames.append("start"); p("  s_mov_b32 s80, s64")
    NP=8-SPARE
    PT=g('pt',0)
    if PT:
        p("  v_lshlrev_b32 v20, 20, v2")
        if PT==2: p("  s_waitcnt vmcnt(0)")
        for k,srd in enumerate((SW,SX,SO)): p.v("  buffer_load_dword v%d, v20, %s, 0 offen"%(64+k,srd),'xp')
    XL=g('xl',0)
    if XL:
        p("  s_and_b32 s53, s2, 1\n  s_lshl_b32 s53, s53, 2\n  s_lshr_b32 s54, s2, 3\n  s_add_u32 s41, s53, s54\n  s_andn2_b32 s40, 4, s41")
        p("  s_lshl_b32 s53, s41, 19\n  s_lshl_b32 s54, s38, 16\n  s_add_u32 s53, s53, s54\n  v_lshrrev_b32 v20, 3, v2\n  v_lshlrev_b32 v20, 11, v20\n  v_and_b32 v1, 7, v2\n  v_lshl_add_u32 v20, v1, 4, v20\n  v_add_u32 v20, s53, v20")
        for r in range(XL):
            p("  s_lshl_b32 s53, s%d, 7"%(41-r))
            for k in range(4):
                p.v("  buffer_load_dwordx4 v[%d:%d], v20, %s, s53 offen"%(64+4*k,67+4*k,SX),'xp')
                if k<3: p("  s_add_u32 s53, s53, 16384")
    if XP:
        p("  s_lshl_b32 s53, s2, 6\n  s_lshl_b32 s54, s38, 3\n  s_add_u32 s53, s53, s54\n  s_lshr_b32 s41, s53, 8\n  s_andn2_b32 s40, 4, s41")
        p("  v_lshrrev_b32 v20, 3, v2\n  v_add_u32 v20, s53, v20\n  v_lshlrev_b32 v20, 11, v20\n  v_and_b32 v1, 1, v2\n  v_lshl_add_u32 v20, v1, 6, v20\n  v_bfe_u32 v1, v2, 1, 2")
        p("  s_sub_u32 s53, s40, 1\n  v_add_u32 v21, s53, v1\n  v_mov_b32 v22, s41\n  v_cmp_eq_u32 vcc, 0, v1\n  v_cndmask_b32 v21, v21, v22, vcc\n  v_lshl_add_u32 v21, v21, 7, v20")
        p.v("  buffer_load_dword v23, v21, %s, 0 offen"%SX,'xp')
        p("  s_xor_b32 s53, s40, 4\n  v_add_u32 v21, s53, v1\n  s_add_u32 s53, s40, 3\n  v_mov_b32 v24, s53\n  v_cmp_eq_u32 vcc, v21, v22\n  v_cndmask_b32 v21, v21, v24, vcc\n  v_lshl_add_u32 v21, v21, 7, v20")
        if XP==1: p.wait('xp')
        p.v("  buffer_load_dword v23, v21, %s, 0 offen"%SX,'xp')
        if not SPARE: p("  s_cmp_ge_u32 s2, 28\n  s_cbranch_scc1 L_drain")
    p("  s_mov_b32 s56, %d\n  s_mov_b32 s57, %d\n  s_mov_b32 s58, %d\n  s_mov_b32 s59, 0\n  s_mov_b32 s55, %d\n  v_mov_b32 v15, 0x7ff00000"%(64*14336,WST,512*R,NP))
    if SPARE:
        p("  s_cmp_lt_u32 s2, 28\n  s_cbranch_scc1 L_pp")
        p("  s_mov_b32 s56, 512\n  s_mov_b32 s57, %d\n  s_mov_b32 s58, %d\n  s_mov_b32 s59, 4096\n  s_mov_b32 s51, 6"%(16*WST,64*128*R))
        p("L_pl:\n  s_add_u32 m0, m0, 4096\n  v_add_u32 v16, 256, v16\n  s_sub_u32 s51, s51, 1\n  buffer_load_dword v16, %s, 0 offen lds\n  buffer_load_dword v16, %s, s50 offen offset:256 lds"%(SL,SL))
        p("  s_cmp_lg_u32 s51, 0\n  s_cbranch_scc1 L_pl\n  s_waitcnt vmcnt(0)\n  s_branch L_pq")
        p("L_pp:\n  s_mov_b32 s22, %d\nL_pq:"%(15*64*14336))
        p.vm.append('lut')
    load_e(p)
    task_addr(p)
    ND=2; SHOT=False
    PW=g('pw',4)
    if PW==1:
        nonce(p)
        p("  s_lshl_b32 s53, s37, %d\n  s_add_u32 s53, s53, %d\n  s_mov_b32 s63, 0"%(13+LR,FOFF))
        p("  s_cmp_eq_u32 s38, 0\n  s_cbranch_scc0 L_pw1")
        p("  v_mov_b32 v12, s53\nL_pw0:\n  buffer_load_dwordx2 v[20:21], v12, %s, 0 offen sc1\n  s_add_u32 s63, s63, 1\n  s_waitcnt vmcnt(0)\n  v_cmp_ne_u64 vcc, v[20:21], v[10:11]\n  s_cbranch_vccz L_pw1"%SW)
        p("  s_cmp_lt_u32 s63, 20000\n  s_cbranch_scc1 L_pw0\nL_pw1:\n  s_barrier")
    QT=g('qt',0)
    def qtouch():
        for k in range(16): p("  s_load_dword s%d, s[12:13], s42 offset:%d"%(64+k,(k>>3)*57344+(k&7)*64))
        p("  s_add_u32 s42, s42, 14336")
    if QT: p("  s_mul_i32 s42, s52, %d\n  s_lshl_b32 s53, s37, 9\n  s_add_u32 s42, s42, s53\n  s_mul_i32 s53, s56, %d\n  s_add_u32 s42, s42, s53\n  s_mov_b32 s12, s20\n  s_mov_b32 s13, s21"%(8*14336,QT))
    def fill():
        for b in range(ND):
            qload(p,32+16*b); p("  v_add_u32 v4, s56, v4")
            for k in range(2 if b<ND-1 else 0): p.v("  buffer_load_dword v17, v15, %s, 0 offen"%SQ,'dummy')
    if HS:
        assert OP==2 and not g('pw0',0) and not g('xe',0) and not PT and not XL
        npg=0
        nonce(p)
        p("  s_waitcnt vmcnt(%d)\n  s_barrier"%(4+npg))
        lookup(p,32,npg,120); wstore(p,120,"0")
        p("  v_add_u32 v4, s56, v4\n  v_add_u32 v5, s59, v5\n  s_mov_b32 s60, s57\n  s_mov_b32 s61, s58\n  s_mov_b32 s62, 0\n  s_sub_u32 s55, s55, 1")
        if HS==2: flag(p,0,"0")
        fill()
        if HS==1: flag(p,10,"0")
    else:
        if PW==2: p.wait('lut')
        if PW==4: p("  s_waitcnt vmcnt(%d)"%PE)
        if PW==3: p("  s_waitcnt vmcnt(0)")
        fill()
        if PW!=1: nonce(p)
        if QT: qtouch()
        p("  s_mov_b32 s60, 0\n  s_mov_b32 s61, 0\n  s_mov_b32 s62, 0")
        p.wait('lut')
        p("  s_barrier")
    lst('lut',pnames,'lut')
    p("L_p:")
    for b in range(ND):
        def pub():
            p("  s_cmp_eq_u32 s62, 0\n  s_cbranch_scc1 L_pa%d"%b); flag(p,4,"s61"); p("  s_add_u32 s61, s61, s58\nL_pa%d:"%b)
        if g('ef',1): lookup(p,32+16*b,6*(ND-1),120+8*b,hook=pub)
        else: lookup(p,32+16*b,6*(ND-1),120+8*b); pub()
        wstore(p,120+8*b,"s60")
        qload(p,32+16*b)
        if QT:
            p("  s_cmp_lt_u32 s62, 3\n  s_cbranch_scc0 L_qt%d"%b); qtouch(); p("L_qt%d:"%b)
        p("  v_add_u32 v4, s56, v4\n  v_add_u32 v5, s59, v5\n  s_add_u32 s62, s62, 1\n  s_add_u32 s60, s60, s57")
        if SHOT and b==1: p("  v_add_u32 v4, s56, v4\n  s_add_u32 s60, s60, s57")
        if ST:
            for it in (0,1,2,5,6,7):
                if it%ND==b:
                    n=len(pnames)
                    p("  s_cmp_eq_u32 s62, %d\n  s_cbranch_scc0 L_ps%d\n  s_memrealtime s[%d:%d]\nL_ps%d:"%(it+1,n,80+2*n,81+2*n,n)); pnames.append('s%d'%it)
        p("  s_cmp_lt_u32 s62, s55\n  s_cbranch_scc%d %s"%((1,"L_p") if b==ND-1 else (0,"L_pe")))
    p("L_pe:")
    flag(p,4,"s61")
    lst('end',pnames,'end')
    p("  s_cmp_eq_u32 s38, 0\n  s_cbranch_scc0 L_pz")
    arrive(p)
    p("  s_cmp_eq_u32 s2, 0\n  s_cbranch_scc0 L_pz\n  s_mov_b32 s63, 0\n  v_lshlrev_b32 v12, 6, v2\n  v_add_u32 v12, %d, v12"%AOFF)
    p("L_pw:")
    if not SPARE: p("  v_mov_b32 v13, 28\n  v_max_u32 v13, v13, v2")
    for k in range(4): p("  s_mov_b32 s53, %d\n  buffer_load_dwordx2 v[%d:%d], v12, %s, s53 offen sc1"%(4096*k,20+2*k,21+2*k,SW))
    p("  s_add_u32 s63, s63, 1\n  s_waitcnt vmcnt(0)\n  v_cmp_ne_u64 s[52:53], v[20:21], v[10:11]")
    if not SPARE: p("  s_and_b32 s52, s52, 0x0fffffff")
    for k in range(1,4): p("  v_cmp_ne_u64 vcc, v[%d:%d], v[10:11]\n  s_or_b64 s[52:53], s[52:53], vcc"%(20+2*k,21+2*k))
    p("  s_cbranch_scc0 L_pv\n  s_cmp_lt_u32 s63, %d\n  s_cbranch_scc1 L_pw"%(1 if g('ponly',0) else 20000))
    p("L_pv:\n  v_mov_b32 v12, %d\n  s_mov_b64 exec, 1\n  buffer_store_dwordx2 v[10:11], v12, %s, 0 offen sc1\n  s_mov_b64 exec, -1\nL_pz:"%(EOFF,SW))
    if ST:
        lout(pnames,0)
        open('names.txt','w').write(" ".join(names)+"\n"+" ".join(pnames))
    p("L_drain:\n  s_waitcnt vmcnt(0)\nL_done:\n  s_endpgm\nL_end:")
    return DOC(single)(a.text(),256,512,GLUT+16384 if XE15 else LDSZ,160+96,102,160)
if __name__=="__main__":
    kw=dict(x.split('=') for x in sys.argv[1:])
    kw={k:(int(v) if v.lstrip('-').isdigit() else v) for k,v in kw.items()}
    print(gen(**kw))
```
